```python
import torch

def _softmax(x, axis=-1):
    return torch.softmax(x, dim=axis)
def _gelu(x):
    return torch.nn.functional.gelu(x, approximate="tanh")
def _silu(x):
    return torch.nn.functional.silu(x)
def _sigmoid(x):
    return torch.sigmoid(x)
def _layernorm(x, axis=-1, eps=1e-5):
    m = x.mean(dim=axis, keepdim=True)
    v = x.var(dim=axis, keepdim=True, unbiased=False)
    return (x - m) / torch.sqrt(v + eps)
def _scatter_add(tgt, idx, src, axis=0):
    return tgt.clone().index_add_(axis, idx, src)
def _segment_sum(src, seg, n):
    out = torch.zeros((n,) + src.shape[1:], dtype=src.dtype)
    return out.index_add_(0, seg, src)
def _pad(x, pw):
    flat = tuple(v for pair in reversed(pw) for v in pair)
    return torch.nn.functional.pad(x, flat)

kernel_name = 'sequential_preLN__ssm_conv_s4__geglu_ffn__prompt'

def setup_inputs():

    _w = (lambda a: (lambda t: t.to(torch.bfloat16) if t.is_floating_point() else t)(torch.as_tensor(a)))
    def _A_setup():
        B, L, D, N = 1, 2048, 640, 128
        A_re = -(lambda _x: torch.exp(torch.as_tensor(_x)))((lambda *s: torch.randn(*s, dtype=torch.bfloat16) * 6.4)(D, N))
        A_im = torch.pi * (lambda *s: torch.randn(*s, dtype=torch.bfloat16) * 0.05)(D, N)
        B_re = (lambda *s: torch.randn(*s, dtype=torch.bfloat16) * 0.05)(D, N)
        B_im = (lambda *s: torch.randn(*s, dtype=torch.bfloat16) * 0.05)(D, N)
        C_re = (lambda *s: torch.randn(*s, dtype=torch.bfloat16) * 0.05)(D, N)
        C_im = (lambda *s: torch.randn(*s, dtype=torch.bfloat16) * 0.05)(D, N)
        log_dt = (lambda *s: torch.randn(*s, dtype=torch.bfloat16) * 0.05)(D) * 0.5 - 4.0
        Dskip = (lambda *s: torch.randn(*s, dtype=torch.bfloat16) * 0.05)(D)
        return {
            "u": _w((lambda *s: torch.randn(*s, dtype=torch.bfloat16) * 0.05)(B, L, D)),
            "A_re": _w(A_re),
            "A_im": _w(A_im),
            "B_re": _w(B_re),
            "B_im": _w(B_im),
            "C_re": _w(C_re),
            "C_im": _w(C_im),
            "log_dt": _w(log_dt),
            "Dskip": _w(Dskip),
        }
    _A_in = _A_setup()

    def _B_setup():
        B, S, D, F = 1, 2048, 640, 1728
        return {
            "x": _w((lambda *s: torch.randn(*s, dtype=torch.bfloat16) * 0.05)(B, S, D)),
            "w_gate": _w((lambda *s: torch.randn(*s, dtype=torch.bfloat16) * 0.05)(D, F)),
            "w_up": _w((lambda *s: torch.randn(*s, dtype=torch.bfloat16) * 0.05)(D, F)),
            "w_down": _w((lambda *s: torch.randn(*s, dtype=torch.bfloat16) * 0.05)(F, D)),
        }
    _B_in = _B_setup()

    return {
        "A_u": _A_in["u"],
        "A_A_re": _A_in["A_re"],
        "A_A_im": _A_in["A_im"],
        "A_B_re": _A_in["B_re"],
        "A_B_im": _A_in["B_im"],
        "A_C_re": _A_in["C_re"],
        "A_C_im": _A_in["C_im"],
        "A_log_dt": _A_in["log_dt"],
        "A_Dskip": _A_in["Dskip"],
        "B_x": _B_in["x"],
        "B_w_gate": _B_in["w_gate"],
        "B_w_up": _B_in["w_up"],
        "B_w_down": _B_in["w_down"],
    }

def reference(A_u, A_A_re, A_A_im, A_B_re, A_B_im, A_C_re, A_C_im, A_log_dt, A_Dskip, B_x, B_w_gate, B_w_up, B_w_down):
    def _A_ref(u, A_re, A_im, B_re, B_im, C_re, C_im, log_dt, Dskip):
        Bsz, L, D = u.shape
        dt = torch.exp(log_dt)[:, None]
        A = A_re + 1j * A_im
        Bc = B_re + 1j * B_im
        Cc = C_re + 1j * C_im
        logdA = dt * A
        dB = dt * Bc
        l = (lambda x, dt: x.to(dt))(torch.arange(L), A_re.dtype)
        P = torch.exp(logdA[:, :, None] * l[None, None, :])
        K = torch.einsum("dn,dnl,dn->dl", Cc, P, dB).real
        L2 = 2 * L
        Kp = _pad(K, ((0, 0), (0, L)))
        up = (lambda x, *d: x.permute(*d))(u, 0, 2, 1)
        up = _pad(up, ((0, 0), (0, 0), (0, L)))
        Kf = (lambda x, axes=(-2,-1): torch.fft.rfft2(x.float(), dim=axes))(Kp[:, None, :], axes=(-2, -1))
        Uf = (lambda x, axes=(-2,-1): torch.fft.rfft2(x.float(), dim=axes))(up[:, :, None, :], axes=(-2, -1))
        Yf = Uf * Kf[None, :, :, :]
        y = (lambda x, s, axes=(-2,-1): torch.fft.irfft2(x, s=s, dim=axes).to(torch.bfloat16))(Yf, (1, L2), axes=(-2, -1))[:, :, 0, :L]
        y = (lambda x, *d: x.permute(*d))(y, 0, 2, 1) + u * Dskip[None, None, :]
        return y

    def _B_ref(x, w_gate, w_up, w_down):
        return (_gelu(x @ w_gate) * (x @ w_up)) @ w_down

    x = A_u
    h = x + _A_ref(_layernorm(x, axis=-1), A_A_re, A_A_im, A_B_re, A_B_im, A_C_re, A_C_im, A_log_dt, A_Dskip)
    h2 = h + _B_ref(_layernorm(h, axis=-1), B_w_gate, B_w_up, B_w_down)
    return h2
```

```python
import re, sys
NAME = "sequential_preLN__ssm_conv_s4__geglu_ffn__prompt"

def vr(a, n=1): return f"v{a}" if n == 1 else f"v[{a}:{a+n-1}]"
def ar(a, n=1): return f"a{a}" if n == 1 else f"a[{a}:{a+n-1}]"
def sr(a, n=1): return f"s{a}" if n == 1 else f"s[{a}:{a+n-1}]"
def R(a, n=1):
    if a < 256:
        assert a + n <= 256, (a, n)
        return vr(a, n)
    assert a + n <= 512
    return ar(a - 256, n)

_reg = re.compile(r"^(-|\|)?([vas])(\d+|\[(\d+):(\d+)\])\|?$")
def parse_regs(op):
    op = op.strip()
    if op in ("vcc",): return [("s", "vcc")]
    if op in ("vcc_lo", "vcc_hi"): return [("s", "vcc")]
    if op in ("exec", "exec_lo", "exec_hi"): return [("s", "exec")]
    if op == "m0": return [("s", "m0")]
    if op == "scc": return []
    m = _reg.match(op)
    if not m: return []
    k = m.group(2)
    if m.group(4) is not None: lo, hi = int(m.group(4)), int(m.group(5))
    else: lo = hi = int(m.group(3))
    return [(k, i) for i in range(lo, hi + 1)]

TRANS = ("v_exp_f32", "v_log_f32", "v_rcp_f32", "v_rsq_f32", "v_sqrt_f32", "v_sin_f32", "v_cos_f32", "v_rcp_iflag_f32")
class Ins:
    __slots__ = ("text", "op", "kind", "w", "r", "passes", "srcc", "dpp", "trans", "nop", "target", "label", "store_data", "lds_dma", "m0use", "ab", "sdwa_dst", "addr")
    def __init__(s, text):
        s.text = text
        s.label = None; s.target = None; s.kind = None; s.w = set(); s.r = set(); s.passes = 0; s.srcc = set(); s.ab = set()
        s.dpp = False; s.trans = False; s.nop = 0; s.store_data = set(); s.lds_dma = False; s.m0use = False; s.sdwa_dst = False; s.addr = set()
        t = text.split(";")[0].strip()
        if t.endswith(":"):
            s.kind = "label"; s.label = t[:-1]; s.op = ""; return
        if t.startswith(".") or t == "":
            s.kind = "dir"; s.op = ""; return
        parts = t.split(None, 1)
        op = parts[0]; s.op = op
        rest = parts[1] if len(parts) > 1 else ""
        ops = []; depth = 0; cur = ""
        for ch in rest:
            if ch in "[(": depth += 1
            if ch in "])": depth -= 1
            if ch == "," and depth == 0: ops.append(cur); cur = ""
            else: cur += ch
        ops.append(cur)
        ops = [o.strip() for o in ops]
        mods = ""
        if ops:
            l = ops[-1].split(None, 1)
            if len(l) > 1: ops[-1] = l[0]; mods = l[1]
        P = [parse_regs(o) for o in ops]
        allr = lambda lst: set(x for p in lst for x in p)
        if op == "s_nop":
            s.kind = "nop"; s.nop = int(ops[0], 0) + 1
        elif op.startswith("s_cbranch") or op == "s_branch":
            s.kind = "branch"; s.target = ops[0]
            if "vcc" in op: s.r = {("s", "vcc")}
            if "exec" in op: s.r = {("s", "exec")}
        elif op == "s_endpgm": s.kind = "end"
        elif op in ("s_waitcnt", "s_barrier", "s_setprio", "s_sleep"): s.kind = "ctl"
        elif op.startswith("s_load") or op.startswith("s_buffer_load") or op in ("s_memtime", "s_memrealtime"):
            s.kind = "smem"; s.w = allr(P[:1]); s.r = allr(P[1:])
        elif op.startswith("s_"):
            s.kind = "salu"
            if op.startswith("s_cmp") or op.startswith("s_bitcmp"): s.r = allr(P)
            else:
                s.w = allr(P[:1]); s.r = allr(P[1:])
                if "saveexec" in op: s.w |= {("s", "exec")}; s.r |= {("s", "exec")}
                if op in ("s_addk_i32", "s_mulk_i32", "s_cmov_b32", "s_cmov_b64"): s.r |= s.w
        elif op.startswith("v_mfma"):
            s.kind = "mfma"; s.w = allr(P[:1]); s.ab = allr(P[1:3]); s.srcc = allr(P[3:4]); s.r = s.ab | s.srcc
            s.passes = 8 if "32x32x16" in op or "32x32x8" in op else 4 if "16x16x32" in op or "16x16x16" in op else 2 if "4x4x4" in op else None
            assert s.passes, op
        elif op.startswith("v_"):
            s.kind = "dot" if op.startswith("v_dot") else "valu"
            s.dpp = "_dpp" in op or "quad_perm" in mods or "row_" in mods or "wave_" in mods
            s.trans = op.replace("_e32", "").replace("_e64", "") in TRANS
            if op.startswith("v_cmpx"):
                s.w = {("s", "exec")}; s.r = allr(P)
            elif op.startswith("v_permlane") or op.startswith("v_swap"):
                s.w = allr(P[:2]); s.r = allr(P[:2])
            elif "_co_" in op and not op.startswith("v_cmp"):
                s.w = allr(P[:2]); s.r = allr(P[2:])
            else:
                s.w = allr(P[:1]); s.r = allr(P[1:])
                if op.startswith(("v_fmac", "v_mac", "v_dot2c", "v_pk_fmac", "v_writelane")) or s.dpp or "sdwa" in op: s.r |= set(x for x in s.w if x[0] != "s")
                if op.startswith("v_cndmask") and len(ops) == 3: s.r |= {("s", "vcc")}
            if "sdwa" in op and "dst_sel:DWORD" not in mods: s.sdwa_dst = True
            if "op_sel" in mods and not op.startswith("v_pk_") and not op.startswith("v_dot"): s.sdwa_dst = True
        elif op.startswith("ds_"):
            s.kind = "ds"
            if "addtid" in op: s.m0use = True; s.r |= {("s", "m0")}
            if op.startswith(("ds_read", "ds_bpermute", "ds_permute", "ds_swizzle")) or "_rtn" in op:
                s.w = allr(P[:1]); s.r |= allr(P[1:])
                if "d16" in op: s.r |= s.w
            else: s.r |= allr(P)
        elif op.startswith(("buffer_", "global_")):
            s.kind = "vmem"
            islds = re.search(r"\blds\b", mods) is not None or "_lds_" in op
            if islds:
                s.lds_dma = True; s.m0use = True; s.r = allr(P) | {("s", "m0")}
            elif "_load" in op:
                s.w = allr(P[:1]); s.r = allr(P[1:])
            elif "atomic" in op:
                s.r = allr(P)
                if "sc0" in mods: s.w = allr(P[:1])
            elif op in ("buffer_wbl2", "buffer_inv"): pass
            else:
                di = 0 if op.startswith("buffer_") else 1
                s.r = allr(P)
                if "x3" in op or "x4" in op: s.store_data = set(P[di])
        else:
            raise ValueError("unknown instr: " + text)

def isv(x): return x[0] in ("v", "a")

def need(p, c):
    n = 0
    pv = p.kind in ("valu", "dot")
    cv = c.kind in ("valu", "dot")
    pwv = set(x for x in p.w if isv(x)); pws = p.w - pwv
    if pv:
        if c.kind == "vmem" and pws & c.r: n = max(n, 5)
        if cv and pws & c.r: n = max(n, 4 if c.op.startswith(("v_readlane", "v_writelane")) else 2)
        if cv and c.dpp and pwv & c.r: n = max(n, 2)
        if ("s", "exec") in pws:
            if cv and c.dpp: n = max(n, 5)
            if c.kind == "mfma" or c.op.startswith(("v_readlane", "v_readfirstlane", "v_writelane", "v_permlane")): n = max(n, 4)
        if ("s", "vcc") in pws and c.op.startswith("s_cbranch_vcc"): n = max(n, 0)
        if c.op.startswith(("v_readlane", "v_readfirstlane")) and pwv & c.r: n = max(n, 1)
        if c.op.startswith("v_permlane") and pwv & c.r: n = max(n, 2)
        if p.trans and cv and not c.trans and pwv & (c.r): n = max(n, 1)
        if p.trans and c.kind in ("ds", "vmem") and pwv & c.r: n = max(n, 1)
        if p.sdwa_dst and cv and pwv & (c.r | c.w): n = max(n, 1)
        if c.kind == "mfma" and pwv & c.r: n = max(n, 2 if p.kind == "valu" else 3)
        if p.kind == "dot" and pwv & (c.r | c.w):
            same = c.kind == "dot" and c.op == p.op
            if same:
                ops_ab = c.r - (c.w if "dot2c" in c.op else set())
                if "dot2c" in c.op: n = max(n, 3 if pwv & ops_ab else 0)
                else:
                    t = c.text.split(";")[0]; o = [x.strip() for x in t.split(None, 1)[1].split(",")]
                    ab = set(parse_regs(o[1])) | set(parse_regs(o[2]))
                    n = max(n, 3 if pwv & ab else 0)
            else: n = max(n, 3)
    if p.kind == "salu" and ("s", "m0") in p.w and c.m0use: n = max(n, 1)
    if p.kind == "vmem" and p.store_data and (c.w & p.store_data): n = max(n, 2 if (cv or c.kind == "mfma") else 1)
    if p.kind == "mfma":
        k = {2: 0, 4: 1, 8: 2}[p.passes]
        if c.kind == "mfma":
            if c.ab & p.w: n = max(n, (5, 8, 12)[k])
            if c.srcc & p.w:
                if c.srcc == p.w and c.passes == p.passes: n = max(n, (2, 0, 0)[k])
                else: n = max(n, (4, 6, 10)[k])
            elif c.w & p.w: n = max(n, (4, 6, 10)[k])
        elif c.kind in ("valu", "dot", "ds", "vmem"):
            if (c.r | c.w) & p.w: n = max(n, (5, 8, 12)[k])
            if cv and c.w & p.srcc: n = max(n, (1, 3, 7)[k])
            if c.kind in ("ds", "vmem") and c.w & p.srcc: n = max(n, (1, 3, 7)[k])
    return n

class Asm:
    def __init__(s):
        s.l = []; s.nlab = 0
    def __call__(s, txt=""):
        for x in txt.split("\n"):
            x = x.strip()
            if x == "" or x.startswith(";"): continue
            s.l.append(x)
        return s
    def label(s, base="L"):
        s.nlab += 1
        return f"{base}_{s.nlab}"
    def finish(s, verbose=True, check_waits=True):
        ins = [Ins(x) for x in s.l]
        added = 0
        def maps():
            labels = {x.label: i for i, x in enumerate(ins) if x.kind == "label"}
            preds = {}
            for i, x in enumerate(ins):
                if x.kind == "branch": preds.setdefault(labels[x.target], []).append(i)
            return preds
        while True:
            preds = maps()
            change = False
            i = 0
            while i < len(ins):
                c = ins[i]
                if c.kind in ("label", "dir", "nop", "ctl", "end"):
                    i += 1; continue
                worst = 0; why = None
                stack = [(i - 1, 0, True)]
                seen = set()
                while stack:
                    j, dist, fall = stack.pop()
                    while j >= 0 and dist < 13:
                        if (j, dist) in seen: break
                        seen.add((j, dist))
                        p = ins[j]
                        if p.kind == "label":
                            for bb in preds.get(j, []): stack.append((bb, dist, False))
                            j -= 1; fall = True; continue
                        if p.kind == "dir": j -= 1; continue
                        if fall and (p.kind == "end" or p.op == "s_branch"): break
                        fall = True
                        if p.kind == "nop": dist += p.nop; j -= 1; continue
                        n = need(p, c)
                        if n - dist > worst: worst = n - dist; why = p
                        dist += 1; j -= 1
                if worst > 0:
                    if verbose > 1: print(f"[hazard] +{worst}: {why.text}  ->  {c.text}", file=sys.stderr)
                    ins.insert(i, Ins(f"s_nop {worst-1}"))
                    added += worst; change = True
                    preds = maps()
                    i += 1
                i += 1
            if not change: break
        if verbose: print(f"[hazard] inserted {added} wait states", file=sys.stderr)
        if check_waits: check_waitcnt(ins)
        s.ins = ins
        return "\n".join((x.text if x.kind in ("label", "dir") else "    " + x.text) for x in ins) + "\n"

def check_waitcnt(ins):
    labels = {x.label: i for i, x in enumerate(ins) if x.kind == "label"}
    starts = [i for i, x in enumerate(ins) if x.kind == "label" and x.label.endswith("_kernel")]
    errs = set()
    for st in starts:
        work = [(st, (), ())]
        visits = {}
        while work:
            i, vm, lg = work.pop()
            vm = list(vm); lg = list(lg)
            while i < len(ins):
                x = ins[i]
                if x.kind == "label":
                    key = (i, tuple(vm), tuple(lg))
                    if key in visits or visits.get(i, 0) > 6: break
                    visits[key] = 1; visits[i] = visits.get(i, 0) + 1
                if x.kind == "end": break
                if x.op == "s_waitcnt":
                    m = re.search(r"vmcnt\((\d+)\)", x.text)
                    if m:
                        n = int(m.group(1)); vm = vm[len(vm) - n:] if n and len(vm) > n else (vm if n else [])
                    m = re.search(r"lgkmcnt\((\d+)\)", x.text)
                    if m:
                        n = int(m.group(1))
                        if n == 0: lg = []
                        elif not any(k == "smem" for k, _ in lg):
                            lg = lg[len(lg) - n:] if len(lg) > n else lg
                touched = x.r | x.w
                for q, nm in ((vm, "vmcnt"), (lg, "lgkmcnt")):
                    for k, regs in q:
                        if regs & touched and not (x.kind == "ds" and k == "ds" and not (regs & x.r)) and not (x.kind == "vmem" and k == "vmem" and not (regs & x.r)):
                            errs.add((i, nm, x.text))
                if x.kind == "vmem": vm.append(("vmem", frozenset(x.w)))
                if x.kind == "ds": lg.append(("ds", frozenset(x.w)))
                if x.kind == "smem": lg.append(("smem", frozenset(x.w)))
                if len(vm) > 63: errs.add((i, "vmcnt overflow", x.text))
                if x.kind == "branch":
                    work.append((labels[x.target], tuple(vm), tuple(lg)))
                    if x.op == "s_branch": break
                i += 1
    for e in sorted(errs): print("[waitcheck] possible missing wait:", e, file=sys.stderr)
    return not errs

def kernel_head(a, label):
    a(f".globl {label}\n.p2align 8\n.type {label},@function\n{label}:")

def kernel_desc(label, vgpr=256, agpr=0, sgpr=102):
    acc = (vgpr + 3) // 4 * 4
    tot = acc + agpr if agpr else vgpr
    return f""".amdhsa_kernel {label}
  .amdhsa_next_free_vgpr {tot}
  .amdhsa_next_free_sgpr {sgpr}
  .amdhsa_accum_offset {acc}
  .amdhsa_group_segment_fixed_size 0
  .amdhsa_kernarg_size 128
  .amdhsa_user_sgpr_count 2
  .amdhsa_user_sgpr_kernarg_segment_ptr 1
  .amdhsa_system_sgpr_workgroup_id_x 1
.end_amdhsa_kernel
"""

def srd(a, d, base, nbytes):
    a(f"s_mov_b32 s{d}, s{base}\ns_mov_b32 s{d+1}, s{base+1}\ns_mov_b32 s{d+2}, {nbytes}\ns_mov_b32 s{d+3}, 0x00020000")

def file_text(launches, body, descs, header=""):
    t = header
    for (label, grid, block, lds) in launches:
        t += f"; @launch kernel={label} grid=({grid},1,1) block=({block},1,1) lds={lds}\n"
    t += '.amdgcn_target "amdgcn-amd-amdhsa--gfx950"\n.text\n' + body
    t += '.section .rodata,"a"\n'
    for d in descs:
        t += ".p2align 6\n" + d
    return t
```

```python
from asmx import *
from layout import *
def emit_colsum(a, L, sW, sWS_srd, sJ, dst, lds0, vt=0):
    srd(a, 48, sW, 640 * 3456)
    a(f"""
    v_lshrrev_b32 v1, 3, v0
    v_and_b32 v2, 7, v0
    v_mul_u32_u24 v3, 3456, v1
    v_lshl_add_u32 v3, v2, 4, v3
    s_lshl_b32 s52, s{sJ}, 7
    """)
    for p in range(20):
        a(f"buffer_load_dwordx4 {vr(8+4*p,4)}, v3, s[48:51], s52 offen")
        if p < 19: a(f"s_add_u32 s52, s52, {32*3456}")
    a("s_mov_b32 s53, 0x00003f80\ns_mov_b32 s54, 0x3f800000")
    for p in range(20):
        a(f"s_waitcnt vmcnt({19-p})")
        for j in range(8):
            a(f"v_dot2_f32_bf16 v{88+j}, v{8+4*p+(j>>1)}, s{53+(j&1)}, {('v%d' % (88+j)) if p else 0}")
    a(f"""
    v_lshlrev_b32 v4, 8, v1
    v_lshl_add_u32 v4, v2, 5, v4
    ds_write_b128 v4, v[88:91] offset:{lds0}
    ds_write_b128 v4, v[92:95] offset:{lds0+16}
    v_lshlrev_b32 v4, 2, v0
    s_waitcnt lgkmcnt(0)
    s_barrier
    v_cmp_gt_u32 vcc, 64, v0
    s_cbranch_vccz {L}_cs_end
    """)
    for g in range(2):
        for r in range(16): a(f"ds_read_b32 v{8+r}, v4 offset:{lds0+256*(16*g+r)}")
        a("s_waitcnt lgkmcnt(0)")
        for r in range(16):
            if g == 0 and r == 0: a("v_mov_b32 v5, v8")
            else: a(f"v_add_f32 v5, v5, v{8+r}")
    a(f"""
    s_lshl_b32 s52, s{sJ}, 8
    s_add_u32 s52, s52, {dst}
    buffer_store_dword v5, v4, {sr(sWS_srd,4)}, s52 offen
    {L}_cs_end:
    """)
```

```python
from asmx import *
from layout import *
from colsum import emit_colsum

LOG2E = 1.4426950408889634
def fbits(x):
    import struct
    return "0x%08x" % struct.unpack("<I", struct.pack("<f", x))[0]

def cmuls(a, lst):
    for d, x, y in lst:
        a(f"v_pk_mul_f32 {vr(d,2)}, {vr(x,2)}, {vr(y,2)} op_sel:[0,0] op_sel_hi:[0,1]")
    for d, x, y in lst:
        a(f"v_pk_fma_f32 {vr(d,2)}, {vr(x,2)}, {vr(y,2)}, {vr(d,2)} op_sel:[1,1,0] op_sel_hi:[1,0,1] neg_lo:[0,1,0]")

def zbases(a, lst, va, vphi, tmp):
    for k, (d, r) in enumerate(lst):
        if r == 1:
            a(f"v_exp_f32 {vr(tmp+k)}, {vr(va)}")
            a(f"v_fract_f32 {vr(d+1)}, {vr(vphi)}")
        else:
            a(f"v_mul_f32 {vr(tmp+k)}, {fbits(r)}, {vr(va)}")
            a(f"v_mul_f32 {vr(d+1)}, {fbits(r)}, {vr(vphi)}")
    for k, (d, r) in enumerate(lst):
        if r != 1:
            a(f"v_exp_f32 {vr(tmp+k)}, {vr(tmp+k)}")
            a(f"v_fract_f32 {vr(d+1)}, {vr(d+1)}")
    for k, (d, r) in enumerate(lst):
        a(f"v_cos_f32 {vr(d)}, {vr(d+1)}")
        a(f"v_sin_f32 {vr(d+1)}, {vr(d+1)}")
    for k, (d, r) in enumerate(lst):
        a(f"v_mul_f32 {vr(d)}, {vr(d)}, {vr(tmp+k)}")
        a(f"v_mul_f32 {vr(d+1)}, {vr(d+1)}, {vr(tmp+k)}")

TS = 528
TCH = 64 * TS
LN_S = 1344

def rho(i, h): return 8 * (i >> 2) + 4 * h + (i & 3)

def emit_A(a, L):
    LN0 = 0; TB0 = 8 * LN_S
    kernel_head(a, L)
    a(f"""
    s_cmp_ge_u32 s2, 256
    s_cbranch_scc1 {L}_end
    s_load_dwordx4 s[4:7], s[0:1], 0
    s_load_dwordx8 s[16:23], s[0:1], 16
    s_load_dwordx4 s[24:27], s[0:1], 48
    s_load_dwordx2 s[28:29], s[0:1], 120
    v_lshrrev_b32 v1, 6, v0
    v_and_b32 v2, 63, v0            ; lane
    s_and_b32 s3, s2, 7
    s_lshr_b32 s33, s2, 3           ; i>>3
    v_readfirstlane_b32 s30, v1     ; wave
    s_lshl_b32 s31, s3, 5
    s_add_u32 s31, s31, s33         ; tb
    s_mul_i32 s32, s3, 27
    s_add_u32 s32, s32, s33
    v_lshrrev_b32 v3, 5, v0
    v_and_b32 v4, 31, v0
    v_mul_u32_u24 v5, 1280, v3
    v_lshl_add_u32 v5, v4, 4, v5    ; row*1280 + 16j
    v_lshlrev_b32 v6, 3, v4
    v_sub_u32 v6, v5, v6            ; row*1280 + 8j
    s_mul_i32 s34, s31, 10240
    s_waitcnt lgkmcnt(0)
    """)
    srd(a, 8, 4, 2048 * 1280); srd(a, 12, 28, WS_SIZE)
    a(f"""
    buffer_load_dwordx4 v[8:11], v5, s[8:11], s34 offen
    buffer_load_dwordx4 v[12:15], v5, s[8:11], s34 offen offset:512
    buffer_load_dwordx2 v[16:17], v6, s[8:11], s34 offen offset:1024
    s_mul_i32 s35, s32, 3
    v_and_b32 v7, 127, v0
    v_lshlrev_b32 v7, 1, v7
    """)
    PB = 20
    for k in range(3):
        a(f"""
        s_add_u32 s36, s35, {k}
        s_min_u32 s{40+k}, s36, 639
        s_lshl_b32 s36, s{40+k}, 8
        v_add_u32 v18, s36, v7
        s_lshl_b32 s36, s{40+k}, 1
        v_mov_b32 v19, s36
        """)
        for j, sb in enumerate((6, 16, 18, 20, 22, 24)):
            a(f"global_load_short_d16_hi v{PB+8*k+j}, v18, s[{sb}:{sb+1}]")
        a(f"global_load_short_d16_hi v{PB+8*k+6}, v19, s[26:27]")
    a(f"""
    s_mov_b32 s37, 0x3f803f80
    v_mov_b32 v44, 0
    v_mov_b32 v45, 0
    s_waitcnt vmcnt(21)
    """)
    for i in range(10):
        a(f"v_dot2_f32_bf16 v44, v{8+i}, s37, v44")
        a(f"v_dot2_f32_bf16 v45, v{8+i}, v{8+i}, v45")
    for sh in ("quad_perm:[1,0,3,2]", "quad_perm:[2,3,0,1]", "row_half_mirror", "row_mirror"):
        a(f"v_add_f32_dpp v44, v44, v44 {sh} row_mask:0xf bank_mask:0xf")
        a(f"v_add_f32_dpp v45, v45, v45 {sh} row_mask:0xf bank_mask:0xf")
    a(f"""
    v_mov_b32 v46, v44
    v_mov_b32 v47, v45
    v_permlane16_swap_b32 v44, v46
    v_permlane16_swap_b32 v45, v47
    v_add_f32 v44, v44, v46
    v_add_f32 v45, v45, v47
    v_mul_f32 v44, {fbits(1/640)}, v44        ; mean
    v_mul_f32 v45, {fbits(1/640)}, v45
    v_fma_f32 v45, -v44, v44, v45
    v_max_f32 v45, 0, v45                     ; var
    v_cvt_pk_bf16_f32 v46, v44, v45
    v_and_b32 v45, 0xffff0000, v46
    v_lshlrev_b32 v44, 16, v46                ; bf16(mean)
    v_add_f32 v45, {fbits(1e-5)}, v45
    v_cvt_pk_bf16_f32 v45, v45, v45
    v_and_b32 v45, 0xffff0000, v45
    v_sqrt_f32 v45, v45
    v_cvt_pk_bf16_f32 v47, v44, v45           ; (m, s) packed
    v_and_b32 v45, 0xffff0000, v47
    v_rcp_f32 v45, v45
    """)
    for i in range(10):
        a(f"v_lshlrev_b32 v{48+2*i}, 16, v{8+i}")
        a(f"v_and_b32 v{49+2*i}, 0xffff0000, v{8+i}")
    for i in range(10):
        a(f"v_pk_add_f32 {vr(48+2*i,2)}, {vr(48+2*i,2)}, v[44:45] op_sel_hi:[1,0] neg_lo:[0,1] neg_hi:[0,1]")
    for i in range(10):
        a(f"v_pk_mul_f32 {vr(48+2*i,2)}, {vr(48+2*i,2)}, v[44:45] op_sel:[0,1] op_sel_hi:[1,1]")
    for i in range(10):
        a(f"v_cvt_pk_bf16_f32 v{8+i}, v{48+2*i}, v{49+2*i}")
    a(f"""
    v_mul_u32_u24 v5, {LN_S}, v3
    v_lshl_add_u32 v6, v4, 3, v5
    v_lshl_add_u32 v5, v4, 4, v5
    ds_write_b128 v5, v[8:11] offset:{LN0}
    ds_write_b128 v5, v[12:15] offset:{LN0+512}
    ds_write_b64 v6, v[16:17] offset:{LN0+1024}
    s_lshl_b32 s36, s31, 5
    s_add_u32 s36, s36, {WS_STATS}
    v_lshlrev_b32 v5, 2, v3
    v_cmp_eq_u32 vcc, 0, v4
    v_bfe_u32 v6, v2, 2, 2                    ; s>>2
    v_mul_u32_u24 v6, {LN_S}, v6
    v_and_b32 v18, 3, v2
    v_lshl_add_u32 v6, v18, 3, v6
    v_lshrrev_b32 v18, 4, v2
    v_lshl_add_u32 v6, v18, 5, v6
    s_lshl_b32 s38, s30, 7
    v_add_u32 v6, s38, v6
    s_lshl_b32 s38, s30, 18                   ; wave*64*4096
    v_lshl_add_u32 v46, v2, 12, s38
    s_lshl_b32 s39, s31, 4
    s_add_u32 s39, s39, {WS_UT}
    s_waitcnt vmcnt(0)
    s_and_saveexec_b64 s[44:45], vcc
    buffer_store_dword v47, v5, s[12:15], s36 offen
    s_mov_b64 exec, s[44:45]
    s_waitcnt lgkmcnt(0)
    s_barrier
    """)
    for n in range(3):
        a(f"ds_read_b64_tr_b16 {vr(8+4*n,2)}, v6 offset:{LN0+512*n}")
        a(f"ds_read_b64_tr_b16 {vr(10+4*n,2)}, v6 offset:{LN0+512*n+4*LN_S}")
    a(f"""
    s_waitcnt lgkmcnt(4)
    buffer_store_dwordx4 v[8:11], v46, s[12:15], s39 offen
    s_add_u32 s39, s39, {256*4096}
    s_waitcnt lgkmcnt(2)
    buffer_store_dwordx4 v[12:15], v46, s[12:15], s39 offen
    s_add_u32 s39, s39, {256*4096}
    s_waitcnt lgkmcnt(0)
    s_cmp_ge_u32 s30, 2
    s_cbranch_scc1 {L}_k0
    buffer_store_dwordx4 v[16:19], v46, s[12:15], s39 offen
    {L}_k0:
    s_cmp_ge_u32 s33, 27
    s_cbranch_scc1 {L}_idle
    s_cmp_ge_u32 s32, 214
    s_cbranch_scc1 {L}_done
    """)
    for k in range(3):
        p = PB + 8 * k
        a(f"""
        v_mul_f32 v44, {fbits(LOG2E)}, v{p+6}
        v_mov_b32 v46, {fbits(LOG2E)}
        v_fma_f32 v45, v{p+6}, v46, -v44
        v_fmac_f32 v45, 0x32a57060, v{p+6}
        v_exp_f32 v44, v44
        v_mul_f32 v45, {fbits(0.6931471805599453)}, v45
        v_fma_f32 v44, v44, v45, v44
        v_cvt_pk_bf16_f32 v44, v44, v44
        v_and_b32 v{p+6}, 0xffff0000, v44           ; dt
        v_mul_f32 v{p}, v{p}, v{p+6}
        v_mul_f32 v{p+1}, v{p+1}, v{p+6}
        v_mul_f32 v{p}, {fbits(LOG2E)}, v{p}
        v_mul_f32 v{p+1}, 0.15915494, v{p+1}
        """)
    a(f"""
    s_and_b32 s36, s30, 1
    s_lshl_b32 s36, s36, 8
    s_add_u32 m0, s36, {TB0}
    s_cmp_ge_u32 s30, 2
    s_cbranch_scc1 {L}_pa
    """)
    def wr(src, ch, row, neg=False, t=[0]):
        r = 60 + (t[0] & 3); t[0] += 1
        a(f"v_cvt_pk_bf16_f32 v{r}, v{src}, {'-' if neg else ''}v{src+1}")
        rows = row if isinstance(row, list) else [row]
        for x in rows:
            off = ch * TCH + x * TS
            assert off < 65536 or True
            a(f"ds_write_addtid_b32 v{r} offset:{off}") if off < 65536 else None
    for k in range(3):
        p = PB + 8 * k
        if k: a(f"s_add_u32 m0, m0, {TCH}")
        Z8, = (44,)
        c = [[46, 48, 50, 52], [64, 66, 68, 70]]
        zbases(a, [(Z8, 8), (c[0][1], 64)], p, p + 1, 56)
        a(f"v_mov_b32 v58, 0x00003f80")
        a(f"ds_write_addtid_b32 v58 offset:{32*TS}")
        cmuls(a, [(c[0][2], c[0][1], c[0][1]), (c[0][0], Z8, Z8)])
        wr(Z8, 0, 33); wr(c[0][1], 0, 40)
        cmuls(a, [(c[0][3], c[0][2], c[0][1])])
        wr(c[0][0], 0, 34); wr(c[0][2], 0, 48); wr(c[0][3], 0, 56)
        for s in range(1, 8):
            src, dst = c[(s + 1) & 1], c[s & 1]
            lst = [(dst[q], src[q], Z8) for q in range(4) if q or s <= 5]
            cmuls(a, lst)
            for q in range(4):
                if q: wr(dst[q], 0, 32 + 8 * q + s)
                elif s <= 5: wr(dst[q], 0, 32 + s + 2)
    a(f"s_branch {L}_mm\n{L}_pa:")
    for k in range(3):
        p = PB + 8 * k
        if k: a(f"s_add_u32 m0, m0, {TCH}")
        Z1, Z8, Z256 = 44, 46, 48
        T = [64 + 2 * i for i in range(12)]
        zbases(a, [(Z1, 1), (Z8, 8), (Z256, 256)], p, p + 1, 56)
        a(f"v_pk_mul_f32 {vr(p+2,2)}, {vr(p+2,2)}, {vr(p+6,2)} op_sel_hi:[1,0]")
        cmuls(a, [(T[0], p + 4, p + 2), (50, Z1, Z1)])
        wr(T[0], 0, rho(0, 0), True)
        cmuls(a, [(T[1], T[0], Z1), (T[2], T[0], 50), (52, 50, 50), (T[8], T[0], Z256)])
        wr(T[1], 0, rho(1, 0), True); wr(T[2], 0, rho(2, 0), True); wr(T[8], 0, [rho(0, 1), rho(1, 1)], True)
        cmuls(a, [(T[3], T[1], 50), (T[4], T[0], 52), (T[5], T[1], 52), (T[6], T[2], 52), (T[9], T[2], Z256), (T[10], T[8], Z8)])
        for i in (3, 4, 5, 6): wr(T[i], 0, rho(i, 0), True)
        wr(T[9], 0, rho(2, 1), True); wr(T[10], 0, rho(7, 1), True)
        cmuls(a, [(T[7], T[3], 52), (T[0], T[4], Z256), (T[1], T[6], Z256), (T[2], T[8], Z256), (T[5], T[10], Z256)])
        wr(T[7], 0, rho(7, 0), True); wr(T[0], 0, [rho(3, 1), rho(4, 1), rho(5, 1)], True); wr(T[1], 0, rho(6, 1), True)
        wr(T[2], 0, rho(8, 0), True); wr(T[5], 0, rho(10, 0), True)
        cmuls(a, [(T[3], T[0], Z256), (T[8], T[2], Z256), (T[10], T[5], Z256)])
        wr(T[3], 0, rho(9, 0), True); wr(T[8], 0, rho(8, 1), True); wr(T[10], 0, rho(10, 1), True)
        cmuls(a, [(T[0], T[3], Z256), (T[2], T[8], Z256), (T[5], T[10], Z256)])
        wr(T[0], 0, rho(9, 1), True); wr(T[2], 0, rho(11, 0), True); wr(T[5], 0, rho(12, 0), True)
        x, y, x2, y2 = T[2], T[5], T[8], T[10]
        for (i, h) in ((11, 1), (13, 0), (13, 1)):
            cmuls(a, [(x2, x, Z256), (y2, y, Z256)])
            wr(x2, 0, rho(i, h), True); wr(y2, 0, rho(i + 1, h), True)
            x, y, x2, y2 = x2, y2, x, y
    a(f"""
    {L}_mm:
    v_and_b32 v4, 31, v2
    v_lshrrev_b32 v5, 5, v2
    v_mul_u32_u24 v6, {TS}, v4
    v_lshl_add_u32 v6, v5, 4, v6
    s_mul_i32 s36, s30, {TCH}
    s_add_u32 s36, s36, {TB0}
    v_add_u32 v6, s36, v6
    s_waitcnt lgkmcnt(0)
    s_barrier
    s_cmp_ge_u32 s30, 3
    s_cbranch_scc1 {L}_done
    """)
    D = 64; FA = 8; FB = 24
    def rd(s):
        a(f"ds_read_b128 {vr(FA+4*(s&3),4)}, v6 offset:{32*s}")
        a(f"ds_read_b128 {vr(FB+4*(s&3),4)}, v6 offset:{32*TS+32*s}")
    for s in range(3): rd(s)
    for s in range(16):
        if s + 3 < 16: rd(s + 3)
        a(f"s_waitcnt lgkmcnt({2*min(3, 15-s)})")
        a(f"v_mfma_f32_32x32x16_bf16 {vr(D,16)}, {vr(FA+4*(s&3),4)}, {vr(FB+4*(s&3),4)}, {vr(D,16) if s else 0}")
    a(f"""
    s_cmp_eq_u32 s30, 1
    s_cselect_b32 s36, s41, s40
    s_cmp_eq_u32 s30, 2
    s_cselect_b32 s36, s42, s36
    s_lshl_b32 s36, s36, 12
    s_add_u32 s36, s36, {WS_K}
    v_lshlrev_b32 v4, 2, v4
    v_lshl_add_u32 v4, v5, 7, v4
    v_sub_u32 v4, 252, v4
    v_and_b32 v5, 1, v2
    v_cmp_eq_u32 vcc, 0, v5
    """)
    SS = 1024
    def st(r, sig, lam0):
        a(f"buffer_store_dword v{r}, v4, s[12:15], s36 offen offset:{sig*SS + 768 - 2*lam0}")
    for sg in range(4): a(f"v_cvt_pk_bf16_f32 v{8+sg}, v{D+4+sg}, v{D+sg}")
    a(f"""
    v_cvt_pk_bf16_f32 v12, v{D+9}, v{D+8}
    v_cvt_pk_bf16_f32 v13, v{D+10}, v{D+8}
    v_cvt_pk_bf16_f32 v14, v{D+10}, v{D+9}
    v_cndmask_b32 v20, v{D+12}, v{D+11}, vcc
    v_cndmask_b32 v21, v{D+14}, v{D+13}, vcc
    v_cvt_pk_bf16_f32 v15, v20, v{D+11}
    v_cvt_pk_bf16_f32 v16, v{D+12}, v{D+11}
    v_cvt_pk_bf16_f32 v17, v21, v{D+13}
    v_cvt_pk_bf16_f32 v18, v{D+14}, v{D+13}
    """)
    for sg in range(4): st(8 + sg, sg, 0)
    for sg in range(4): st((12, 12, 13, 14)[sg], sg, 128)
    for sg in range(4): st((15, 16, 16, 16)[sg], sg, 256)
    for sg in range(4): st((17, 18, 18, 18)[sg], sg, 384)
    a(f"""
    {L}_done:
    s_endpgm
    {L}_idle:
    s_load_dwordx2 s[6:7], s[0:1], 80
    s_sub_u32 s34, s33, 27
    s_lshl_b32 s34, s34, 3
    s_add_u32 s34, s34, s3
    s_cmp_ge_u32 s34, 27
    s_cbranch_scc1 {L}_end
    s_waitcnt lgkmcnt(0)
    """)
    emit_colsum(a, L, 6, 12, 34, WS_CS, TB0)
    a(f"{L}_end:\ns_endpgm")
    return dict(label=L, grid=256, block=256, lds=TB0 + 3 * TCH, vgpr=96, agpr=0)
```

```python
from asmx import *
from layout import *
from colsum import emit_colsum

KS = 1216
CH = 64 + 4096 + 4 * KS
B0 = 1024
def emit_B(a, L):
    kernel_head(a, L)
    a(f"""
    s_cmp_ge_u32 s2, 256
    s_cbranch_scc1 {L}_end
    s_load_dwordx2 s[4:5], s[0:1], 64
    s_load_dwordx2 s[6:7], s[0:1], 88
    s_load_dwordx2 s[28:29], s[0:1], 120
    v_lshrrev_b32 v1, 6, v0
    v_and_b32 v2, 63, v0            ; lane
    s_and_b32 s3, s2, 7
    s_lshr_b32 s33, s2, 3
    v_readfirstlane_b32 s30, v1     ; wave
    s_mul_i32 s32, s3, 27
    s_add_u32 s32, s32, s33         ; c
    v_lshlrev_b32 v3, 4, v2         ; lane*16
    s_waitcnt lgkmcnt(0)
    """)
    srd(a, 12, 28, WS_SIZE)
    a(f"""
    s_cmp_ge_u32 s33, 27
    s_cbranch_scc1 {L}_idle
    s_cmp_ge_u32 s32, 214
    s_cbranch_scc1 {L}_end
    s_mul_i32 s35, s32, 3
    s_lshl_b32 s36, s30, 10         ; w*1024
    s_mul_i32 s37, s30, {KS}
    """)
    for k in range(3):
        a(f"""
        s_add_u32 s38, s35, {k}
        s_min_u32 s{40+k}, s38, 639
        s_lshl_b32 s38, s{40+k}, 12
        s_add_u32 s38, s38, s36
        s_add_u32 m0, s36, {B0 + k*CH + 64}
        s_add_u32 s39, s38, {WS_K}
        buffer_load_dwordx4 v3, s[12:15], s38 offen lds
        s_add_u32 m0, s37, {B0 + k*CH + 4160}
        s_lshl_b32 s38, s{40+k}, 1
        buffer_load_dwordx4 v3, s[12:15], s39 offen lds
        v_mov_b32 v{4+k}, s38
        """)
    a(f"""
    v_lshlrev_b32 v7, 2, v2
    s_add_u32 s38, s36, {WS_STATS}
    s_sub_u32 s39, {WS_STATS + 7*1024}, s36
    """)
    for i in range(4): a(f"buffer_load_dword v{8+i}, v7, s[12:15], s38 offen offset:{256*i}")
    for i in range(4): a(f"buffer_load_dword v{12+i}, v7, s[12:15], s39 offen offset:{256*i}")
    for k in range(3): a(f"global_load_short_d16_hi v{4+k}, v{4+k}, s[4:5]")
    a(f"""
    v_mov_b32 v16, 0
    s_add_u32 s38, s37, {B0 + 4160 + 1024}
    v_add_u32 v17, s38, v7
    v_add_u32 v18, {B0 - 192}, v7
    v_cmp_gt_u32 vcc, 48, v2
    v_cndmask_b32 v17, v18, v17, vcc
    v_lshlrev_b32 v18, 2, v0
    ds_write_b32 v18, v16
    """)
    for k in range(3): a(f"ds_write_b32 v17, v16 offset:{k*CH}")
    vA, vS, vL, vUS, vUL, vST, vSL, vCW = 20, 21, 22, 23, 24, 25, 26, 27
    iA, iS, iL = 28, 29, 30
    a(f"""
    v_and_b32 v17, 3, v2                    ; sigma
    v_mul_u32_u24 v{iA}, {KS}, v17
    v_bfe_u32 v18, v2, 2, 3                 ; r
    v_lshlrev_b32 v18, 4, v18
    v_sub_u32 v{iA}, v{iA}, v18
    v_lshrrev_b32 v19, 5, v2                ; kh
    v_lshl_add_u32 v{iA}, v19, 4, v{iA}
    v_add_u32 v{iA}, {B0 + 4160 + 2*552 - 96}, v{iA}
    v_bfe_u32 v18, v2, 2, 2
    v_add_u32 v18, v18, v17
    v_lshrrev_b32 v17, 4, v2
    v_lshl_add_u32 v18, v17, 2, v18
    v_lshlrev_b32 v18, 3, v18
    s_lshl_b32 s38, s30, 9
    s_add_u32 s39, s38, {B0 + 64 + 8*41 - 384}
    v_add_u32 v{iS}, s39, v18
    s_sub_u32 s39, {B0 + 64 + 8*41 - 384 + 7*512}, s38
    v_add_u32 v{iL}, s39, v18
    v_lshlrev_b32 v17, 1, v2
    s_add_u32 s39, s38, {B0 + 64}
    v_add_u32 v{vUS}, s39, v17
    s_sub_u32 s39, {B0 + 64 + 7*512}, s38
    v_add_u32 v{vUL}, s39, v17
    v_and_b32 v17, 31, v2
    v_lshlrev_b32 v17, 1, v17
    v_mul_u32_u24 v18, 40960, v19
    v_add_u32 v17, v17, v18
    s_mul_i32 s38, s30, {8*40960}
    v_add_u32 v{vST}, s38, v17
    s_sub_u32 s38, {7*8*40960}, s38
    v_add_u32 v{vSL}, s38, v17
    s_lshl_b32 s38, s30, 4
    v_mov_b32 v{vCW}, s38
    s_sub_u32 s38, 112, s38
    v_mov_b32 v{vCW+4}, s38
    s_waitcnt vmcnt(15) lgkmcnt(0)
    s_barrier
    """)
    vCL = vCW + 4
    FA, FS, FL = 32, 48, 64
    DS, DL = 80, 96
    T = 112
    M_, S_ = 144, 152
    H0 = 160
    U = 168
    def rdA(j, k): a(f"ds_read_b128 {vr(FA+4*j,4)}, v{vA} offset:{k*CH + 32*(3-j)}")
    def rdB(F, v, j, k):
        a(f"ds_read_b64_tr_b16 {vr(F+4*j,2)}, v{v} offset:{k*CH + 128*(3-j)}")
        a(f"ds_read_b64_tr_b16 {vr(F+4*j+2,2)}, v{v} offset:{k*CH + 128*(3-j) + 32}")
    def mf(D, j, F, first=False): a(f"v_mfma_f32_32x32x16_bf16 {vr(D,16)}, {vr(FA+4*j,4)}, {vr(F+4*j,4)}, {0 if first else vr(D,16)}")
    def reset(): a(f"v_mov_b32 v{vA}, v{iA}\nv_mov_b32 v{vS}, v{iS}\nv_mov_b32 v{vL}, v{iL}")
    def adv(s=True):
        a(f"v_subrev_u32 v{vA}, 128, v{vA}\nv_subrev_u32 v{vL}, 512, v{vL}")
        if s: a(f"v_subrev_u32 v{vS}, 512, v{vS}")
    reset()
    for j in range(4): rdA(j, 0); rdB(FL, vL, j, 0); rdB(FS, vS, j, 0)
    for k in range(3):
        def joint(first):
            adv()
            for j in range(4):
                a("s_waitcnt lgkmcnt(15)")
                mf(DL, j, FL, first and j == 0); mf(DS, j, FS, first and j == 0)
                rdA(j, k); rdB(FL, vL, j, k); rdB(FS, vS, j, k)
        joint(True)
        a(f"""
        s_mov_b32 s44, s30
        s_cmp_eq_u32 s44, 0
        s_cbranch_scc1 {L}_j{k}e
        {L}_j{k}:
        """)
        joint(False)
        a(f"""
        s_sub_u32 s44, s44, 1
        s_cmp_lg_u32 s44, 0
        s_cbranch_scc1 {L}_j{k}
        {L}_j{k}e:
        s_lshl_b32 s44, s30, 1
        s_sub_u32 s44, 6, s44
        s_cmp_eq_u32 s44, 0
        s_waitcnt lgkmcnt(0)
        s_cbranch_scc1 {L}_s{k}e
        {L}_s{k}:
        """)
        adv(False)
        for j in range(4):
            a("s_waitcnt lgkmcnt(9)")
            mf(DL, j, FL); rdA(j, k); rdB(FL, vL, j, k)
        a(f"""
        s_sub_u32 s44, s44, 1
        s_cmp_lg_u32 s44, 0
        s_cbranch_scc1 {L}_s{k}
        {L}_s{k}e:
        """)
        if k == 0: a("s_waitcnt vmcnt(0)\ns_barrier")
        reset()
        for j in range(4):
            n = 9 - 3 * j + (5 * j if k < 2 else 0)
            a(f"s_waitcnt lgkmcnt({min(n,15)})")
            mf(DL, j, FL)
            if k < 2: rdA(j, k + 1); rdB(FL, vL, j, k + 1); rdB(FS, vS, j, k + 1)
        if k < 2: a("s_waitcnt lgkmcnt(4)")
        for i in range(4): a(f"ds_read_u16_d16_hi v{U+i}, v{vUS} offset:{k*CH + 128*i}")
        for i in range(4): a(f"ds_read_u16_d16_hi v{U+4+i}, v{vUL} offset:{k*CH + 128*i}")
        if k == 0:
            for i in range(8):
                a(f"v_lshlrev_b32 v{M_+i}, 16, v{8+i}\nv_and_b32 v{S_+i}, 0xffff0000, v{8+i}")
        def level(dst, hi, lo):
            for t in range(2):
                for i in range(1, 4): a(f"v_add_f32_dpp v{dst[t][i]}, v{hi[t][i-1]}, v{lo[t][i]} wave_ror:1 row_mask:0xf bank_mask:0xf")
                a(f"v_add_f32_dpp v{dst[t][0]}, v{hi[t][0]}, v{lo[t][0]} wave_shr:1 row_mask:0xf bank_mask:0xf bound_ctrl:0")
            for t in range(2):
                for i in range(1, 4): a(f"v_add_f32_dpp v{dst[t][i]}, v{hi[t][i]}, v{lo[t][i]} wave_shr:1 row_mask:0xf bank_mask:0xf")
        Dr = lambda sg: [[D + 4 * i + sg for i in range(4)] for D in (DS, DL)]
        T2 = [[T + 4 * t + i for i in range(4)] for t in range(2)]
        T1 = [[T + 8 + 4 * t + i for i in range(4)] for t in range(2)]
        Y = [[T + 16 + 4 * t + i for i in range(4)] for t in range(2)]
        level(T2, Dr(3), Dr(2))
        a("s_waitcnt lgkmcnt(0)")
        for t, D in enumerate((DS, DL)):
            for i in range(4):
                a(f"v_fma_f32 v{D+4*i}, v{U+4*t+i}, v{4+k}, v{D+4*i}")
        level(T1, T2, Dr(1))
        for t, D in enumerate((DS, DL)):
            for i in range(4):
                a(f"v_fma_f32 v{U+4*t+i}, v{U+4*t+i}, v{S_+4*t+i}, v{M_+4*t+i}")
        a(f"""
        s_mov_b32 exec_lo, 0
        s_brev_b32 exec_hi, 1
        """)
        for t, (D, v) in enumerate(((DS, vCW), (DL, vCL))):
            a(f"ds_write_b32 v{v}, v{T1[t][3]} offset:{k*256 + 16}")
            a(f"ds_write_b32 v{v}, v{T2[t][3]} offset:{k*256 + 20}")
            a(f"ds_write_b32 v{v}, v{D+15} offset:{k*256 + 24}")
        a("s_mov_b64 exec, -1")
        for t, D in enumerate((DS, DL)):
            for i in range(4):
                a(f"v_add_f32 v{D+4*i}, v{D+4*i}, v{U+4*t+i}")
        Y[0][0] = H0 + 2 * k; Y[1][0] = H0 + 2 * k + 1
        level(Y, T1, Dr(0))
        a(f"""
        s_lshl_b32 s45, s{40+k}, 6
        s_add_u32 s45, s45, {WS_H + 81920}
        s_add_u32 s46, s45, 81920
        s_add_u32 s47, s46, 81920
        """)
        for i in range(1, 4):
            a(f"v_cvt_pk_bf16_f32 v{T+i}, v{Y[0][i]}, v{Y[1][i]}")
        for i in range(1, 4):
            a(f"buffer_store_short v{T+i}, v{vST}, s[12:15], s{44+i} offen")
            a(f"buffer_store_short_d16_hi v{T+i}, v{vSL}, s[12:15], s{44+i} offen")
    a(f"""
    v_min_u32 v17, 3, v2
    v_lshl_add_u32 v18, v17, 2, v{vCL}
    v_lshl_add_u32 v17, v17, 2, v{vCW}
    s_waitcnt lgkmcnt(0)
    s_barrier
    """)
    for k in range(3):
        a(f"ds_read_b32 v{T+2*k}, v17 offset:{k*256}\nds_read_b32 v{T+2*k+1}, v18 offset:{k*256}")
    for k in range(3):
        a(f"""
        s_lshl_b32 s45, s{40+k}, 6
        s_add_u32 s45, s45, {WS_H}
        s_waitcnt lgkmcnt({4-2*k})
        v_add_f32 v{T+2*k}, v{T+2*k}, v{H0+2*k}
        v_add_f32 v{T+2*k+1}, v{T+2*k+1}, v{H0+2*k+1}
        v_cvt_pk_bf16_f32 v{T+2*k}, v{T+2*k}, v{T+2*k+1}
        buffer_store_short v{T+2*k}, v{vST}, s[12:15], s45 offen
        buffer_store_short_d16_hi v{T+2*k}, v{vSL}, s[12:15], s45 offen
        """)
    a(f"""
    s_endpgm
    {L}_idle:
    s_sub_u32 s34, s33, 27
    s_lshl_b32 s34, s34, 3
    s_add_u32 s34, s34, s3
    s_cmp_ge_u32 s34, 27
    s_cbranch_scc1 {L}_end
    """)
    emit_colsum(a, L, 6, 12, 34, WS_CS + 1728 * 4, 0)
    a(f"{L}_end:\ns_endpgm")
    return dict(label=L, grid=256, block=256, lds=B0 + 3 * CH, vgpr=176, agpr=0)
```

```python
from asmx import *
from layout import *
from phA import fbits

WROW = 224
WMAT = 64 * WROW + 128
WB = 2 * 64 * WROW + 128
NB = 4
HR0 = NB * WB
CS0 = HR0 + 4 * 8192
WOFF = [0, 0, 1024, 0, 1024, 0, 1024]
C1 = -2.302208198; C2 = -0.1029432397

def emit_C(a, L, stats="dot2"):
    kernel_head(a, L)
    a(f"""
    s_cmp_ge_u32 s2, 256
    s_cbranch_scc1 {L}_end
    s_load_dwordx4 s[4:7], s[0:1], 80
    s_load_dwordx2 s[28:29], s[0:1], 120
    v_lshrrev_b32 v1, 6, v0
    v_and_b32 v2, 63, v0
    s_and_b32 s3, s2, 7
    s_lshr_b32 s33, s2, 3
    v_readfirstlane_b32 s30, v1
    s_and_b32 s31, s3, 1
    s_lshl_b32 s31, s31, 3
    s_and_b32 s34, s33, 7
    s_add_u32 s31, s31, s34          ; rb
    s_lshr_b32 s32, s3, 1
    s_lshl_b32 s32, s32, 2
    s_lshr_b32 s34, s33, 3
    s_add_u32 s32, s32, s34          ; fs
    s_mul_i32 s32, s32, 27
    s_lshr_b32 s32, s32, 2           ; u0
    s_lshl_b32 s31, s31, 2
    s_add_u32 s31, s31, s30          ; tb32
    v_lshlrev_b32 v3, 4, v2          ; lane*16
    s_and_b32 s35, s30, 1
    s_mul_i32 s36, s35, {32*3456}
    s_lshl_b32 s37, s32, 5
    s_add_u32 s36, s36, s37
    """)
    VO = 8
    for n in range(7):
        a(f"""
        v_add_u32 v4, {64*n}, v2
        v_mul_u32_u24 v5, 4682, v4
        v_lshrrev_b32 v5, 16, v5
        v_mul_u32_u24 v6, 14, v5
        v_sub_u32 v6, v4, v6
        v_mul_u32_u24 v5, 3456, v5
        v_lshl_add_u32 v5, v6, 4, v5
        s_sub_u32 s37, s36, {WOFF[n]}
        v_add_u32 v{VO+n}, s37, v5
        """)
    a(f"""
    v_cmp_le_u32 vcc, 28, v2
    v_add_u32 v4, {6912 - 28*16}, v3
    s_lshl_b32 s38, s32, 6
    s_add_u32 s38, s38, {WS_CS}
    v_cndmask_b32 v4, v3, v4, vcc
    s_mul_i32 s37, s31, 40960
    s_add_u32 s37, s37, {WS_H}
    s_waitcnt lgkmcnt(0)
    s_cmp_ge_u32 s30, 2
    s_cselect_b32 s8, s6, s4
    s_cselect_b32 s9, s7, s5
    s_cselect_b32 s39, {WMAT}, 0
    s_mov_b32 s10, {640*3456}
    s_mov_b32 s11, 0x00020000
    s_add_u32 s16, s28, s37
    s_addc_u32 s17, s29, 0
    s_mov_b32 s18, 40960
    s_mov_b32 s19, 0x00020000
    """)
    srd(a, 12, 28, WS_SIZE)
    sMW, sMH, sOW, sOH, sRW, sIT, sMW0 = 40, 41, 42, 43, 44, 45, 46
    a(f"""
    s_mul_i32 s35, s35, {32*WROW}
    s_add_u32 s{sMW0}, s39, s35
    s_mov_b32 s{sMW}, s{sMW0}
    s_lshl_b32 s{sMH}, s30, 13
    s_add_u32 s{sMH}, s{sMH}, {HR0}
    s_mov_b32 s{sOW}, 0
    s_mov_b32 s{sOH}, 0
    s_mov_b32 m0, {CS0}
    """)
    seq = []
    a("buffer_load_dwordx4 v4, s[12:15], s38 offen lds")
    def mH(): a(f"s_mov_b32 m0, s{sMH}")
    def mW(n): a(f"s_add_u32 m0, s{sMW}, {1024*n}")
    def dmaH(j, m=True):
        if m: mH()
        a(f"buffer_load_dwordx4 v3, s[16:19], s{sOH} offen offset:{1024*j} lds")
    def dmaW(ns, m=True):
        for n in ns:
            if m and WOFF[n] == 0: mW(n)
            a(f"buffer_load_dwordx4 v{VO+n}, s[8:11], s{sOW} offen offset:{WOFF[n]} lds")
    def advW():
        a(f"s_add_u32 s{sMW}, s{sMW}, {WB}\ns_add_u32 s{sOW}, s{sOW}, {64*3456}")
    dmaH(0); seq.append(("h", 0))
    dmaW(range(7)); seq += [("w", 0, n) for n in range(7)]
    for j in (1, 2, 3): dmaH(j, j == 1); seq.append(("h", j))
    advW(); dmaW(range(7)); seq += [("w", 1, n) for n in range(7)]
    a(f"s_xor_b32 s{sMH}, s{sMH}, 4096\ns_add_u32 s{sOH}, s{sOH}, 4096")
    for j in range(4): dmaH(j, j == 0); seq.append(("h", 4 + j))
    advW(); dmaW(range(7)); seq += [("w", 2, n) for n in range(7)]
    advW(); dmaW([0]); seq.append(("w", 3, 0))
    a(f"s_xor_b32 s{sMH}, s{sMH}, 4096\ns_add_u32 s{sOH}, s{sOH}, 4096")
    n0 = len(seq) - 1 - seq.index(("w", 0, 6))
    sim = list(seq); NH = [99] * 4; NW = 99
    for c in range(10):
        for j in range(4):
            ks = 4 * c + j
            NH[j] = min(NH[j], len(sim) - 1 - sim.index(("h", ks + 1)))
            sim.append(("h", ks + 8))
            if j == 3:
                NW = min(NW, len(sim) - 1 - sim.index(("w", c + 1, 6)))
                sim.append(("w", c + 4, 0))
            else: sim += [("w", c + 3, 1 + 2 * j), ("w", c + 3, 2 + 2 * j)]
    vW0, vW, vH = 15, 16, 17
    SUM, SQ = 18, 19
    FB = 20
    FA = 28
    ACC = 64
    ST = 56
    a(f"""
    v_lshrrev_b32 v4, 4, v2                ; G
    v_and_b32 v5, 1, v4
    v_lshrrev_b32 v4, 1, v4
    v_bfe_u32 v6, v2, 2, 2
    v_lshl_add_u32 v6, v4, 3, v6           ; k = 8*(G>>1) + (s>>2)
    v_and_b32 v7, 3, v2
    v_lshlrev_b32 v7, 3, v7
    v_mul_u32_u24 v{vW0}, {WROW}, v6
    v_mul_u32_u24 v4, {WMAT}, v5
    v_add3_u32 v{vW0}, v{vW0}, v4, v7
    v_mov_b32 v{vW}, v{vW0}
    v_lshl_add_u32 v{vH}, v6, 6, v7
    v_lshl_add_u32 v{vH}, v5, 5, v{vH}
    v_add_u32 v{vH}, s{sMH}, v{vH}
    s_mov_b32 s{sRW}, 0
    s_mov_b32 s{sIT}, 10
    s_mov_b32 s47, 0x3f803f80
    v_mov_b32 v{SUM}, 0
    v_mov_b32 v{SQ}, 0
    """)
    for i in range(112): a(f"v_mov_b32 v{ACC+i}, 0")
    if stats == "mfma4":
        for i in range(8): a(f"v_mov_b32 v{ST+i}, 0")
        a(f"v_mov_b32 v4, s47\nv_mov_b32 v5, s47")
    def RA(j, u):
        for i in range(2): a(f"ds_read_b64_tr_b16 {vr(FA+4*u+2*i,2)}, v{vW} offset:{j*16*WROW + i*4*WROW + u*32}")
    def RB(slot, par):
        for i in range(2): a(f"ds_read_b64_tr_b16 {vr(FB+4*par+2*i,2)}, v{vH} offset:{slot*1024 + i*256}")
    a(f"s_waitcnt vmcnt({n0})\ns_barrier")
    RA(0, 0); RB(0, 0)
    for u in range(1, 7): RA(0, u)
    a(f"{L}_loop:")
    for j in range(4):
        par = j & 1
        B = FB + 4 * par
        def M(u): a(f"v_mfma_f32_32x32x16_bf16 {vr(ACC+16*u,16)}, {vr(FA+4*u,4)}, {vr(B,4)}, {vr(ACC+16*u,16)}")
        def S(q):
            if stats == "dot2":
                a(f"v_dot2_f32_bf16 v{SUM}, v{B+q}, s47, v{SUM}")
                a(f"v_dot2_f32_bf16 v{SQ}, v{B+q}, v{B+q}, v{SQ}")
            elif stats == "mfma4":
                if q < 2: a(f"v_mfma_f32_4x4x4_16b_bf16 {vr(ST,4)}, {vr(B+2*q,2)}, {vr(B+2*q,2)}, {vr(ST,4)}")
                else: a(f"v_mfma_f32_4x4x4_16b_bf16 {vr(ST+4,4)}, v[4:5], {vr(B+2*(q-2),2)}, {vr(ST+4,4)}")
        a("s_waitcnt lgkmcnt(6)")
        M(0)
        if j < 3:
            RA(j + 1, 0)
            a(f"s_waitcnt vmcnt({NH[j]})"); RB(j + 1, par ^ 1)
            M(1); mH(); RA(j + 1, 1); dmaH(j, False)
            M(2); RA(j + 1, 2); S(0)
            M(3); RA(j + 1, 3); S(1)
            a("s_waitcnt lgkmcnt(10)")
            M(4); mW(1 + 2 * j); RA(j + 1, 4); dmaW([1 + 2 * j, 2 + 2 * j], False)
            M(5); RA(j + 1, 5); S(2)
            M(6); RA(j + 1, 6); S(3)
        else:
            a(f"v_xor_b32 v{vH}, 4096, v{vH}")
            a(f"s_add_u32 s{sRW}, s{sRW}, {WB}\ns_cmp_eq_u32 s{sRW}, {NB*WB}\ns_cselect_b32 s{sRW}, 0, s{sRW}")
            a(f"s_waitcnt vmcnt({NH[j]})"); RB(0, par ^ 1)
            M(1); mH(); a(f"v_add_u32 v{vW}, s{sRW}, v{vW0}"); dmaH(j, False); S(0)
            M(2); S(1)
            a(f"s_waitcnt vmcnt({NW}) lgkmcnt(2)\ns_barrier")
            RA(0, 0); RA(0, 1)
            M(3); RA(0, 2); RA(0, 3)
            M(4); RA(0, 4)
            a(f"s_add_u32 s{sMW}, s{sMW}, {WB}\ns_add_u32 s{sOW}, s{sOW}, {64*3456}")
            a(f"s_cmp_ge_u32 s{sMW}, {NB*WB}\ns_cselect_b32 s{sMW}, s{sMW0}, s{sMW}")
            M(5); mW(0); RA(0, 5); dmaW([0], False); S(2)
            a(f"s_xor_b32 s{sMH}, s{sMH}, 4096\ns_add_u32 s{sOH}, s{sOH}, 4096")
            M(6); RA(0, 6); S(3)
    a(f"""
    s_sub_u32 s{sIT}, s{sIT}, 1
    s_cmp_lg_u32 s{sIT}, 0
    s_cbranch_scc1 {L}_loop
    """)
    vC = 15
    CSR = 24
    a(f"""
    v_lshrrev_b32 v4, 5, v2
    v_lshlrev_b32 v{vC}, 4, v4
    v_add_u32 v{vC}, {CS0}, v{vC}
    s_waitcnt lgkmcnt(0)
    """)
    def RC(u):
        b = CSR + 16 * (u & 1)
        for m in range(2):
            for j in range(2): a(f"ds_read_b128 {vr(b+8*m+4*j,4)}, v{vC} offset:{448*m + 64*u + 32*j}")
    RC(0)
    if stats == "mfma4":
        a(f"""
        v_and_b32 v4, 3, v2
        v_cmp_eq_u32 vcc, 1, v4
        v_cndmask_b32 v{SQ}, v{ST}, v{ST+1}, vcc
        v_cmp_eq_u32 vcc, 2, v4
        v_cndmask_b32 v{SQ}, v{SQ}, v{ST+2}, vcc
        v_cmp_eq_u32 vcc, 3, v4
        v_cndmask_b32 v{SQ}, v{SQ}, v{ST+3}, vcc
        v_mov_b32 v{SUM}, v{ST+4}
        """)
    KK, MM = 20, 22
    a(f"""
    v_mov_b32 v4, v{SUM}
    v_mov_b32 v5, v{SQ}
    v_permlane32_swap_b32 v{SUM}, v4
    v_permlane32_swap_b32 v{SQ}, v5
    v_add_f32 v4, v{SUM}, v4
    v_add_f32 v5, v{SQ}, v5
    v_mul_f32 v4, {fbits(1/640)}, v4
    v_mul_f32 v5, {fbits(1/640)}, v5
    v_fma_f32 v5, -v4, v4, v5
    v_max_f32 v5, 0, v5
    v_cvt_pk_bf16_f32 v6, v4, v5
    v_and_b32 v5, 0xffff0000, v6
    v_lshlrev_b32 v4, 16, v6
    v_add_f32 v5, {fbits(1e-5)}, v5
    v_cvt_pk_bf16_f32 v5, v5, v5
    v_and_b32 v5, 0xffff0000, v5
    v_sqrt_f32 v5, v5
    v_sub_f32 v{MM}, 0, v4
    v_cvt_pk_bf16_f32 v5, v5, v5
    v_and_b32 v5, 0xffff0000, v5
    v_rcp_f32 v6, v5
    v_mul_f32 v{MM+1}, v5, v5
    v_mul_f32 v{KK}, {fbits(C1)}, v6
    v_mul_f32 v7, v6, v6
    v_mul_f32 v6, {fbits(C2)}, v6
    v_mul_f32 v{KK+1}, v6, v7
    s_lshl_b32 s36, s32, 16
    s_lshl_b32 s37, s31, 10
    s_add_u32 s36, s36, s37
    s_add_u32 s36, s36, {WS_G}
    """)
    T = 56
    for u in range(7):
        D = ACC + 16 * u; cs = CSR + 16 * (u & 1); O = 8 if u & 1 else 4
        if u < 6: RC(u + 1); a("s_waitcnt lgkmcnt(4)")
        else: a("s_waitcnt lgkmcnt(0)")
        P = range(4)
        for p in range(8): a(f"v_pk_fma_f32 {vr(D+2*p,2)}, {vr(cs+2*p,2)}, {vr(MM,2)}, {vr(D+2*p,2)} op_sel_hi:[1,0,1]")
        for p in P: a(f"v_pk_mul_f32 {vr(T+2*p,2)}, {vr(D+2*p,2)}, {vr(D+2*p,2)}")
        for p in P: a(f"v_pk_fma_f32 {vr(T+2*p,2)}, {vr(T+2*p,2)}, {vr(KK,2)}, {vr(KK,2)} op_sel:[0,1,0] op_sel_hi:[1,1,0]")
        for p in P: a(f"v_pk_mul_f32 {vr(T+2*p,2)}, {vr(T+2*p,2)}, {vr(D+2*p,2)}")
        for i in range(8): a(f"v_exp_f32 v{T+i}, v{T+i}")
        for p in P: a(f"v_pk_mul_f32 {vr(D+2*p,2)}, {vr(D+2*p,2)}, {vr(D+8+2*p,2)}")
        for p in P: a(f"v_pk_fma_f32 {vr(T+2*p,2)}, {vr(T+2*p,2)}, {vr(MM,2)}, {vr(MM,2)} op_sel:[0,1,1] op_sel_hi:[1,1,1]")
        for i in range(8): a(f"v_rcp_f32 v{T+i}, v{T+i}")
        for p in P: a(f"v_pk_mul_f32 {vr(D+2*p,2)}, {vr(D+2*p,2)}, {vr(T+2*p,2)}")
        for p in P: a(f"v_cvt_pk_bf16_f32 v{O+p}, v{D+2*p}, v{D+2*p+1}")
        a(f"buffer_store_dwordx4 {vr(O,4)}, v3, s[12:15], s36 offen")
        if u < 6: a("s_add_u32 s36, s36, 65536")
    a(f"{L}_end:\ns_endpgm")
    return dict(label=L, grid=256, block=256, lds=CS0 + 1024, vgpr=176, agpr=0)
```

```python
from asmx import *
from layout import *

R_ = 5
RING = R_ * 5120
HR = 4 * RING
def emit_D(a, L):
    kernel_head(a, L)
    a(f"""
    s_cmp_ge_u32 s2, 256
    s_cbranch_scc1 {L}_end
    s_load_dwordx4 s[4:7], s[0:1], 96
    s_load_dwordx2 s[28:29], s[0:1], 120
    v_lshrrev_b32 v1, 6, v0
    v_and_b32 v2, 63, v0
    s_and_b32 s3, s2, 7
    s_lshr_b32 s33, s2, 3
    v_readfirstlane_b32 s30, v1
    s_and_b32 s31, s3, 1
    s_lshl_b32 s31, s31, 4
    s_and_b32 s34, s3, 2
    s_lshl_b32 s34, s34, 2
    s_add_u32 s31, s31, s34
    s_and_b32 s34, s33, 7
    s_add_u32 s31, s31, s34          ; tt
    s_and_b32 s32, s3, 4
    s_lshr_b32 s34, s33, 3
    s_add_u32 s32, s32, s34          ; dt
    s_mul_i32 s36, s32, 160
    """)
    VO = 8
    WO = [0, 1024, 2048, 0, 1024]
    for n in range(5):
        a(f"""
        v_add_u32 v4, {64*n}, v2
        v_mul_u32_u24 v5, 6554, v4
        v_lshrrev_b32 v5, 16, v5
        v_mul_u32_u24 v6, 10, v5
        v_sub_u32 v6, v4, v6
        v_mul_u32_u24 v5, 1280, v5
        v_lshl_add_u32 v5, v6, 4, v5
        s_sub_u32 s37, s36, {WO[n]}
        v_add_u32 v{VO+n}, s37, v5
        """)
    VH = 13
    sOW, sOH, sMW = 40, 41, 42
    a(f"""
    v_lshrrev_b32 v4, 5, v2
    v_lshlrev_b32 v4, 16, v4
    v_bfe_u32 v5, v2, 4, 1
    v_lshl_add_u32 v4, v5, 9, v4
    v_and_b32 v5, 15, v2
    v_lshl_add_u32 v4, v5, 4, v4
    s_lshr_b32 s36, s30, 1
    s_lshl_b32 s36, s36, 10
    s_and_b32 s37, s30, 1
    s_lshl_b32 s37, s37, 8
    s_or_b32 s36, s36, s37
    v_or_b32 v{VH}, s36, v4
    v_xor_b32 v{VH+1}, 256, v{VH}
    v_xor_b32 v{VH+2}, 1024, v{VH}
    v_xor_b32 v{VH+3}, 1280, v{VH}
    s_mul_i32 s{sOW}, s30, 40960
    s_lshl_b32 s{sOH}, s30, 17
    s_lshl_b32 s36, s31, 11
    s_add_u32 s{sOH}, s{sOH}, s36
    s_mul_i32 s{sMW}, s30, {RING}
    v_lshlrev_b32 v3, 4, v2
    s_lshl_b32 s36, s31, 1
    s_lshr_b32 s37, s30, 1
    s_add_u32 s36, s36, s37
    s_mul_i32 s36, s36, 40960
    s_mul_i32 s37, s32, 5120
    s_add_u32 s36, s36, s37
    s_add_u32 s43, s36, {WS_H}
    s_mul_i32 s44, s30, 5120
    s_add_u32 s44, s44, {HR}
    s_waitcnt lgkmcnt(0)
    s_add_u32 s16, s28, {WS_G}
    s_addc_u32 s17, s29, 0
    s_mov_b32 s18, {108*65536}
    s_mov_b32 s19, 0x00020000
    """)
    srd(a, 8, 4, 1728 * 1280); srd(a, 12, 28, WS_SIZE); srd(a, 20, 6, 2048 * 1280)
    ACC = 176
    FA = 24
    HB = 48
    vA = 17
    NK = 14
    seq = []
    def loads(x):
        sl = x % R_
        t = []
        def w(n):
            def f():
                a(f"buffer_load_dwordx4 v{VO+n}, s[8:11], s{sOW} offen offset:{WO[n]} lds"); seq.append(("w", x, n))
            return f
        def h(q):
            def f():
                a(f"buffer_load_dwordx4 {vr(HB+16*sl+4*q,4)}, v{VH+q}, s[16:19], s{sOH} offen"); seq.append(("h", x, q))
            return f
        t.append(lambda: a(f"s_add_u32 m0, s{sMW}, {sl*5120}"))
        t.append(h(0))
        t += [w(0), w(1), w(2)]
        t.append(lambda: a(f"s_add_u32 m0, s{sMW}, {sl*5120+3072}"))
        t.append(h(1))
        t += [w(3), w(4), h(2), h(3)]
        t.append(lambda: a(f"s_add_u32 s{sOW}, s{sOW}, {4*40960}\ns_add_u32 s{sOH}, s{sOH}, {4*131072}"))
        return t
    for x in range(R_ - 1):
        for f in loads(x): f()
        if x == 1:
            a(f"s_mov_b32 m0, s44")
            for n in range(4):
                a(f"buffer_load_dwordx4 v3, s[12:15], s43 offen offset:{1024*n} lds"); seq.append(("r", n))
            a(f"s_add_u32 m0, s44, 4096\ns_add_u32 s43, s43, 4096")
            a(f"buffer_load_dwordx4 v3, s[12:15], s43 offen lds"); seq.append(("r", 4))
    a(f"""
    v_lshrrev_b32 v4, 5, v2
    v_lshlrev_b32 v4, 4, v4
    v_bfe_u32 v5, v2, 2, 3
    v_add_u32 v4, v4, v5             ; f = 16*(g>>1) + 4*(g&1) + (s>>2)
    v_mul_u32_u24 v4, 160, v4
    v_and_b32 v5, 3, v2
    v_lshl_add_u32 v4, v5, 3, v4
    v_add_u32 v{vA}, s{sMW}, v4
    """)
    def wv(key):
        n = len(seq) - 1 - seq.index(key)
        a(f"s_waitcnt vmcnt({n})")
    def RA(x, e):
        for i in range(2): a(f"ds_read_b64_tr_b16 {vr(FA+4*e+2*i,2)}, v{vA} offset:{(x%R_)*5120 + i*8*160 + e*32}")
    wv(("w", 0, 4))
    for e in range(5): RA(0, e)
    for x in range(NK):
        fill = loads(x + R_ - 1) if x + R_ - 1 < NK else []
        fill = list(fill)
        wv(("h", x, 3))
        for e in range(5):
            last = x == NK - 1
            a(f"s_waitcnt lgkmcnt({8 if not last else 8 - 2*e})")
            for q in range(4):
                d = ACC + 16 * e + 4 * q
                a(f"v_mfma_f32_16x16x32_bf16 {vr(d,4)}, {vr(FA+4*e,4)}, {vr(HB+16*(x%R_)+4*q,4)}, {vr(d,4) if x else 0}")
                if fill and q < 3: fill.pop(0)()
            if not last:
                if e == 0: wv(("w", x + 1, 4))
                RA(x + 1, e)
        assert not fill
    a(f"""
    v_add_u32 v4, s{sMW}, v3
    s_xor_b32 s36, s30, 1
    s_mul_i32 s36, s36, {RING}
    v_add_u32 v5, s36, v3
    s_xor_b32 s36, s30, 2
    s_mul_i32 s36, s36, {RING}
    v_add_u32 v6, s36, v3
    s_xor_b32 s36, s30, 3
    s_mul_i32 s36, s36, {RING}
    v_add_u32 v7, s36, v3
    v_lshrrev_b32 v8, 2, v2
    v_lshlrev_b32 v8, 6, v8
    v_and_b32 v9, 3, v2
    v_lshl_add_u32 v8, v9, 3, v8
    s_and_b32 s36, s30, 1
    s_lshl_b32 s36, s36, 5
    s_add_u32 s36, s36, s44
    v_add_u32 v8, s36, v8
    """)
    for q in (1, 2, 3):
        for e in range(5): a(f"ds_write_b128 v4, {vr(ACC+16*e+4*q,4)} offset:{(q*5+e)*1024}")
    RS = 24
    for e in range(5): a(f"ds_read_b64_tr_b16 {vr(RS+2*e,2)}, v8 offset:{e*1024}")
    a(f"""
    v_and_b32 v9, 15, v2
    v_mul_u32_u24 v9, 1280, v9
    v_lshrrev_b32 v10, 4, v2
    v_lshl_add_u32 v9, v10, 3, v9
    s_lshl_b32 s36, s31, 2
    s_add_u32 s36, s36, s30
    s_mul_i32 s36, s36, {16*1280}
    s_mul_i32 s37, s32, 160
    s_add_u32 s36, s36, s37
    s_waitcnt lgkmcnt(0)
    s_barrier
    """)
    X = 48
    for e in range(5):
        for q in (1, 2, 3): a(f"ds_read_b128 {vr(X+12*e+4*(q-1),4)}, v{4+q} offset:{(q*5+e)*1024}")
    for e in range(5):
        d = ACC + 16 * e
        for i in range(2):
            a(f"v_lshlrev_b32 v{36+2*i}, 16, v{RS+2*e+i}\nv_and_b32 v{37+2*i}, 0xffff0000, v{RS+2*e+i}")
        for i in range(2): a(f"v_pk_add_f32 {vr(d+2*i,2)}, {vr(d+2*i,2)}, {vr(36+2*i,2)}")
        a(f"s_waitcnt lgkmcnt({12-3*e})")
        for i in range(2): a(f"v_pk_add_f32 {vr(X+12*e+2*i,2)}, {vr(X+12*e+2*i,2)}, {vr(X+12*e+4+2*i,2)}")
        for i in range(2): a(f"v_pk_add_f32 {vr(d+2*i,2)}, {vr(d+2*i,2)}, {vr(X+12*e+8+2*i,2)}")
        for i in range(2): a(f"v_pk_add_f32 {vr(d+2*i,2)}, {vr(d+2*i,2)}, {vr(X+12*e+2*i,2)}")
        for i in range(2): a(f"v_cvt_pk_bf16_f32 v{d+4+i}, v{d+2*i}, v{d+2*i+1}")
        a(f"buffer_store_dwordx2 {vr(d+4,2)}, v9, s[20:23], s36 offen offset:{32*e}")
    a(f"{L}_end:\ns_endpgm")
    return dict(label=L, grid=256, block=256, lds=HR + 4 * 5120, vgpr=256, agpr=0)
```

```python
import re, sys
NAME = "sequential_preLN__ssm_conv_s4__geglu_ffn__prompt"

def vr(a, n=1): return f"v{a}" if n == 1 else f"v[{a}:{a+n-1}]"
def ar(a, n=1): return f"a{a}" if n == 1 else f"a[{a}:{a+n-1}]"
def sr(a, n=1): return f"s{a}" if n == 1 else f"s[{a}:{a+n-1}]"
def R(a, n=1):
    if a < 256:
        assert a + n <= 256, (a, n)
        return vr(a, n)
    assert a + n <= 512
    return ar(a - 256, n)

_reg = re.compile(r"^(-|\|)?([vas])(\d+|\[(\d+):(\d+)\])\|?$")
def parse_regs(op):
    op = op.strip()
    if op in ("vcc",): return [("s", "vcc")]
    if op in ("vcc_lo", "vcc_hi"): return [("s", "vcc")]
    if op in ("exec", "exec_lo", "exec_hi"): return [("s", "exec")]
    if op == "m0": return [("s", "m0")]
    if op == "scc": return []
    m = _reg.match(op)
    if not m: return []
    k = m.group(2)
    if m.group(4) is not None: lo, hi = int(m.group(4)), int(m.group(5))
    else: lo = hi = int(m.group(3))
    return [(k, i) for i in range(lo, hi + 1)]

TRANS = ("v_exp_f32", "v_log_f32", "v_rcp_f32", "v_rsq_f32", "v_sqrt_f32", "v_sin_f32", "v_cos_f32", "v_rcp_iflag_f32")
class Ins:
    __slots__ = ("text", "op", "kind", "w", "r", "passes", "srcc", "dpp", "trans", "nop", "target", "label", "store_data", "lds_dma", "m0use", "ab", "sdwa_dst", "addr")
    def __init__(s, text):
        s.text = text
        s.label = None; s.target = None; s.kind = None; s.w = set(); s.r = set(); s.passes = 0; s.srcc = set(); s.ab = set()
        s.dpp = False; s.trans = False; s.nop = 0; s.store_data = set(); s.lds_dma = False; s.m0use = False; s.sdwa_dst = False; s.addr = set()
        t = text.split(";")[0].strip()
        if t.endswith(":"):
            s.kind = "label"; s.label = t[:-1]; s.op = ""; return
        if t.startswith(".") or t == "":
            s.kind = "dir"; s.op = ""; return
        parts = t.split(None, 1)
        op = parts[0]; s.op = op
        rest = parts[1] if len(parts) > 1 else ""
        ops = []; depth = 0; cur = ""
        for ch in rest:
            if ch in "[(": depth += 1
            if ch in "])": depth -= 1
            if ch == "," and depth == 0: ops.append(cur); cur = ""
            else: cur += ch
        ops.append(cur)
        ops = [o.strip() for o in ops]
        mods = ""
        if ops:
            l = ops[-1].split(None, 1)
            if len(l) > 1: ops[-1] = l[0]; mods = l[1]
        P = [parse_regs(o) for o in ops]
        allr = lambda lst: set(x for p in lst for x in p)
        if op == "s_nop":
            s.kind = "nop"; s.nop = int(ops[0], 0) + 1
        elif op.startswith("s_cbranch") or op == "s_branch":
            s.kind = "branch"; s.target = ops[0]
            if "vcc" in op: s.r = {("s", "vcc")}
            if "exec" in op: s.r = {("s", "exec")}
        elif op == "s_endpgm": s.kind = "end"
        elif op in ("s_waitcnt", "s_barrier", "s_setprio", "s_sleep"): s.kind = "ctl"
        elif op.startswith("s_load") or op.startswith("s_buffer_load") or op in ("s_memtime", "s_memrealtime"):
            s.kind = "smem"; s.w = allr(P[:1]); s.r = allr(P[1:])
        elif op.startswith("s_"):
            s.kind = "salu"
            if op.startswith("s_cmp") or op.startswith("s_bitcmp"): s.r = allr(P)
            else:
                s.w = allr(P[:1]); s.r = allr(P[1:])
                if "saveexec" in op: s.w |= {("s", "exec")}; s.r |= {("s", "exec")}
                if op in ("s_addk_i32", "s_mulk_i32", "s_cmov_b32", "s_cmov_b64"): s.r |= s.w
        elif op.startswith("v_mfma"):
            s.kind = "mfma"; s.w = allr(P[:1]); s.ab = allr(P[1:3]); s.srcc = allr(P[3:4]); s.r = s.ab | s.srcc
            s.passes = 8 if "32x32x16" in op or "32x32x8" in op else 4 if "16x16x32" in op or "16x16x16" in op else 2 if "4x4x4" in op else None
            assert s.passes, op
        elif op.startswith("v_"):
            s.kind = "dot" if op.startswith("v_dot") else "valu"
            s.dpp = "_dpp" in op or "quad_perm" in mods or "row_" in mods or "wave_" in mods
            s.trans = op.replace("_e32", "").replace("_e64", "") in TRANS
            if op.startswith("v_cmpx"):
                s.w = {("s", "exec")}; s.r = allr(P)
            elif op.startswith("v_permlane") or op.startswith("v_swap"):
                s.w = allr(P[:2]); s.r = allr(P[:2])
            elif "_co_" in op and not op.startswith("v_cmp"):
                s.w = allr(P[:2]); s.r = allr(P[2:])
            else:
                s.w = allr(P[:1]); s.r = allr(P[1:])
                if op.startswith(("v_fmac", "v_mac", "v_dot2c", "v_pk_fmac", "v_writelane")) or s.dpp or "sdwa" in op: s.r |= set(x for x in s.w if x[0] != "s")
                if op.startswith("v_cndmask") and len(ops) == 3: s.r |= {("s", "vcc")}
            if "sdwa" in op and "dst_sel:DWORD" not in mods: s.sdwa_dst = True
            if "op_sel" in mods and not op.startswith("v_pk_") and not op.startswith("v_dot"): s.sdwa_dst = True
        elif op.startswith("ds_"):
            s.kind = "ds"
            if "addtid" in op: s.m0use = True; s.r |= {("s", "m0")}
            if op.startswith(("ds_read", "ds_bpermute", "ds_permute", "ds_swizzle")) or "_rtn" in op:
                s.w = allr(P[:1]); s.r |= allr(P[1:])
                if "d16" in op: s.r |= s.w
            else: s.r |= allr(P)
        elif op.startswith(("buffer_", "global_")):
            s.kind = "vmem"
            islds = re.search(r"\blds\b", mods) is not None or "_lds_" in op
            if islds:
                s.lds_dma = True; s.m0use = True; s.r = allr(P) | {("s", "m0")}
            elif "_load" in op:
                s.w = allr(P[:1]); s.r = allr(P[1:])
            elif "atomic" in op:
                s.r = allr(P)
                if "sc0" in mods: s.w = allr(P[:1])
            elif op in ("buffer_wbl2", "buffer_inv"): pass
            else:
                di = 0 if op.startswith("buffer_") else 1
                s.r = allr(P)
                if "x3" in op or "x4" in op: s.store_data = set(P[di])
        else:
            raise ValueError("unknown instr: " + text)

def isv(x): return x[0] in ("v", "a")

def need(p, c):
    n = 0
    pv = p.kind in ("valu", "dot")
    cv = c.kind in ("valu", "dot")
    pwv = set(x for x in p.w if isv(x)); pws = p.w - pwv
    if pv:
        if c.kind == "vmem" and pws & c.r: n = max(n, 5)
        if cv and pws & c.r: n = max(n, 4 if c.op.startswith(("v_readlane", "v_writelane")) else 2)
        if cv and c.dpp and pwv & c.r: n = max(n, 2)
        if ("s", "exec") in pws:
            if cv and c.dpp: n = max(n, 5)
            if c.kind == "mfma" or c.op.startswith(("v_readlane", "v_readfirstlane", "v_writelane", "v_permlane")): n = max(n, 4)
        if ("s", "vcc") in pws and c.op.startswith("s_cbranch_vcc"): n = max(n, 0)
        if c.op.startswith(("v_readlane", "v_readfirstlane")) and pwv & c.r: n = max(n, 1)
        if c.op.startswith("v_permlane") and pwv & c.r: n = max(n, 2)
        if p.trans and cv and not c.trans and pwv & (c.r): n = max(n, 1)
        if p.trans and c.kind in ("ds", "vmem") and pwv & c.r: n = max(n, 1)
        if p.sdwa_dst and cv and pwv & (c.r | c.w): n = max(n, 1)
        if c.kind == "mfma" and pwv & c.r: n = max(n, 2 if p.kind == "valu" else 3)
        if p.kind == "dot" and pwv & (c.r | c.w):
            same = c.kind == "dot" and c.op == p.op
            if same:
                ops_ab = c.r - (c.w if "dot2c" in c.op else set())
                if "dot2c" in c.op: n = max(n, 3 if pwv & ops_ab else 0)
                else:
                    t = c.text.split(";")[0]; o = [x.strip() for x in t.split(None, 1)[1].split(",")]
                    ab = set(parse_regs(o[1])) | set(parse_regs(o[2]))
                    n = max(n, 3 if pwv & ab else 0)
            else: n = max(n, 3)
    if p.kind == "salu" and ("s", "m0") in p.w and c.m0use: n = max(n, 1)
    if p.kind == "vmem" and p.store_data and (c.w & p.store_data): n = max(n, 2 if (cv or c.kind == "mfma") else 1)
    if p.kind == "mfma":
        k = {2: 0, 4: 1, 8: 2}[p.passes]
        if c.kind == "mfma":
            if c.ab & p.w: n = max(n, (5, 8, 12)[k])
            if c.srcc & p.w:
                if c.srcc == p.w and c.passes == p.passes: n = max(n, (2, 0, 0)[k])
                else: n = max(n, (4, 6, 10)[k])
            elif c.w & p.w: n = max(n, (4, 6, 10)[k])
        elif c.kind in ("valu", "dot", "ds", "vmem"):
            if (c.r | c.w) & p.w: n = max(n, (5, 8, 12)[k])
            if cv and c.w & p.srcc: n = max(n, (1, 3, 7)[k])
            if c.kind in ("ds", "vmem") and c.w & p.srcc: n = max(n, (1, 3, 7)[k])
    return n

class Asm:
    def __init__(s):
        s.l = []; s.nlab = 0
    def __call__(s, txt=""):
        for x in txt.split("\n"):
            x = x.strip()
            if x == "" or x.startswith(";"): continue
            s.l.append(x)
        return s
    def label(s, base="L"):
        s.nlab += 1
        return f"{base}_{s.nlab}"
    def finish(s, verbose=True, check_waits=True):
        ins = [Ins(x) for x in s.l]
        added = 0
        def maps():
            labels = {x.label: i for i, x in enumerate(ins) if x.kind == "label"}
            preds = {}
            for i, x in enumerate(ins):
                if x.kind == "branch": preds.setdefault(labels[x.target], []).append(i)
            return preds
        while True:
            preds = maps()
            change = False
            i = 0
            while i < len(ins):
                c = ins[i]
                if c.kind in ("label", "dir", "nop", "ctl", "end"):
                    i += 1; continue
                worst = 0; why = None
                stack = [(i - 1, 0, True)]
                seen = set()
                while stack:
                    j, dist, fall = stack.pop()
                    while j >= 0 and dist < 13:
                        if (j, dist) in seen: break
                        seen.add((j, dist))
                        p = ins[j]
                        if p.kind == "label":
                            for bb in preds.get(j, []): stack.append((bb, dist, False))
                            j -= 1; fall = True; continue
                        if p.kind == "dir": j -= 1; continue
                        if fall and (p.kind == "end" or p.op == "s_branch"): break
                        fall = True
                        if p.kind == "nop": dist += p.nop; j -= 1; continue
                        n = need(p, c)
                        if n - dist > worst: worst = n - dist; why = p
                        dist += 1; j -= 1
                if worst > 0:
                    if verbose > 1: print(f"[hazard] +{worst}: {why.text}  ->  {c.text}", file=sys.stderr)
                    ins.insert(i, Ins(f"s_nop {worst-1}"))
                    added += worst; change = True
                    preds = maps()
                    i += 1
                i += 1
            if not change: break
        if verbose: print(f"[hazard] inserted {added} wait states", file=sys.stderr)
        if check_waits: check_waitcnt(ins)
        s.ins = ins
        return "\n".join((x.text if x.kind in ("label", "dir") else "    " + x.text) for x in ins) + "\n"

def check_waitcnt(ins):
    labels = {x.label: i for i, x in enumerate(ins) if x.kind == "label"}
    starts = [i for i, x in enumerate(ins) if x.kind == "label" and x.label.endswith("_kernel")]
    errs = set()
    for st in starts:
        work = [(st, (), ())]
        visits = {}
        while work:
            i, vm, lg = work.pop()
            vm = list(vm); lg = list(lg)
            while i < len(ins):
                x = ins[i]
                if x.kind == "label":
                    key = (i, tuple(vm), tuple(lg))
                    if key in visits or visits.get(i, 0) > 6: break
                    visits[key] = 1; visits[i] = visits.get(i, 0) + 1
                if x.kind == "end": break
                if x.op == "s_waitcnt":
                    m = re.search(r"vmcnt\((\d+)\)", x.text)
                    if m:
                        n = int(m.group(1)); vm = vm[len(vm) - n:] if n and len(vm) > n else (vm if n else [])
                    m = re.search(r"lgkmcnt\((\d+)\)", x.text)
                    if m:
                        n = int(m.group(1))
                        if n == 0: lg = []
                        elif not any(k == "smem" for k, _ in lg):
                            lg = lg[len(lg) - n:] if len(lg) > n else lg
                touched = x.r | x.w
                for q, nm in ((vm, "vmcnt"), (lg, "lgkmcnt")):
                    for k, regs in q:
                        if regs & touched and not (x.kind == "ds" and k == "ds" and not (regs & x.r)) and not (x.kind == "vmem" and k == "vmem" and not (regs & x.r)):
                            errs.add((i, nm, x.text))
                if x.kind == "vmem": vm.append(("vmem", frozenset(x.w)))
                if x.kind == "ds": lg.append(("ds", frozenset(x.w)))
                if x.kind == "smem": lg.append(("smem", frozenset(x.w)))
                if len(vm) > 63: errs.add((i, "vmcnt overflow", x.text))
                if x.kind == "branch":
                    work.append((labels[x.target], tuple(vm), tuple(lg)))
                    if x.op == "s_branch": break
                i += 1
    for e in sorted(errs): print("[waitcheck] possible missing wait:", e, file=sys.stderr)
    return not errs

def kernel_head(a, label):
    a(f".globl {label}\n.p2align 8\n.type {label},@function\n{label}:")

def kernel_desc(label, vgpr=256, agpr=0, sgpr=102):
    acc = (vgpr + 3) // 4 * 4
    tot = acc + agpr if agpr else vgpr
    return f""".amdhsa_kernel {label}
  .amdhsa_next_free_vgpr {tot}
  .amdhsa_next_free_sgpr {sgpr}
  .amdhsa_accum_offset {acc}
  .amdhsa_group_segment_fixed_size 0
  .amdhsa_kernarg_size 128
  .amdhsa_user_sgpr_count 2
  .amdhsa_user_sgpr_kernarg_segment_ptr 1
  .amdhsa_system_sgpr_workgroup_id_x 1
.end_amdhsa_kernel
"""

def srd(a, d, base, nbytes):
    a(f"s_mov_b32 s{d}, s{base}\ns_mov_b32 s{d+1}, s{base+1}\ns_mov_b32 s{d+2}, {nbytes}\ns_mov_b32 s{d+3}, 0x00020000")

def file_text(launches, body, descs, header=""):
    t = header
    for (label, grid, block, lds) in launches:
        t += f"; @launch kernel={label} grid=({grid},1,1) block=({block},1,1) lds={lds}\n"
    t += '.amdgcn_target "amdgcn-amd-amdhsa--gfx950"\n.text\n' + body
    t += '.section .rodata,"a"\n'
    for d in descs:
        t += ".p2align 6\n" + d
    return t

PROF = False
def stamp(a, i):
    if not PROF: return
    a(f"s_memrealtime s[{64+2*i}:{65+2*i}]\ns_waitcnt lgkmcnt(0)")
def stamp_dump(a, kidx, n, ws_srd=12, drain=True):
    if not PROF: return
    from layout import WS_DBG
    if drain: a("s_waitcnt vmcnt(0)")
    stamp(a, n)
    a("s_mov_b64 exec, -1\nv_mov_b32 v1, 0")
    for i in range(n + 1): a(f"v_writelane_b32 v1, s{64+2*i}, {i}")
    a(f"""
    s_lshl_b32 s62, s2, 2
    s_add_u32 s62, s62, s30
    s_lshl_b32 s62, s62, 6
    s_add_u32 s62, s62, {WS_DBG + kidx * 65536}
    v_mbcnt_lo_u32_b32 v0, -1, 0
    v_mbcnt_hi_u32_b32 v0, -1, v0
    v_lshlrev_b32 v0, 2, v0
    s_mov_b64 exec, 0xffff
    buffer_store_dword v1, v0, s[{ws_srd}:{ws_srd+3}], s62 offen
    """)
```

```python
from asmx import *
from layout import *
from colsum import emit_colsum

LOG2E = 1.4426950408889634
def fbits(x):
    import struct
    return "0x%08x" % struct.unpack("<I", struct.pack("<f", x))[0]

def cmuls(a, lst):
    for d, x, y in lst:
        a(f"v_pk_mul_f32 {vr(d,2)}, {vr(x,2)}, {vr(y,2)} op_sel:[0,0] op_sel_hi:[0,1]")
    for d, x, y in lst:
        a(f"v_pk_fma_f32 {vr(d,2)}, {vr(x,2)}, {vr(y,2)}, {vr(d,2)} op_sel:[1,1,0] op_sel_hi:[1,0,1] neg_lo:[0,1,0]")

def zbases(a, lst, va, vphi, tmp):
    for k, (d, r) in enumerate(lst):
        if r == 1:
            a(f"v_exp_f32 {vr(tmp+k)}, {vr(va)}")
            a(f"v_fract_f32 {vr(d+1)}, {vr(vphi)}")
        else:
            a(f"v_mul_f32 {vr(tmp+k)}, {fbits(r)}, {vr(va)}")
            a(f"v_mul_f32 {vr(d+1)}, {fbits(r)}, {vr(vphi)}")
    for k, (d, r) in enumerate(lst):
        if r != 1:
            a(f"v_exp_f32 {vr(tmp+k)}, {vr(tmp+k)}")
            a(f"v_fract_f32 {vr(d+1)}, {vr(d+1)}")
    for k, (d, r) in enumerate(lst):
        a(f"v_cos_f32 {vr(d)}, {vr(d+1)}")
        a(f"v_sin_f32 {vr(d+1)}, {vr(d+1)}")
    for k, (d, r) in enumerate(lst):
        a(f"v_mul_f32 {vr(d)}, {vr(d)}, {vr(tmp+k)}")
        a(f"v_mul_f32 {vr(d+1)}, {vr(d+1)}, {vr(tmp+k)}")

TS = 528
TCH = 64 * TS
LN_S = 1344

def rho(i, h): return 8 * (i >> 2) + 4 * h + (i & 3)

def emit_A(a, L):
    LN0 = 0; TB0 = 8 * LN_S
    kernel_head(a, L)
    a(f"""
    s_cmp_ge_u32 s2, 256
    s_cbranch_scc1 {L}_end
    s_load_dwordx4 s[4:7], s[0:1], 0
    s_load_dwordx8 s[16:23], s[0:1], 16
    s_load_dwordx4 s[24:27], s[0:1], 48
    s_load_dwordx2 s[28:29], s[0:1], 120
    v_lshrrev_b32 v1, 6, v0
    v_and_b32 v2, 63, v0            ; lane
    s_and_b32 s3, s2, 7
    s_lshr_b32 s33, s2, 3           ; i>>3
    v_readfirstlane_b32 s30, v1     ; wave
    s_lshl_b32 s31, s3, 5
    s_add_u32 s31, s31, s33         ; tb
    s_mul_i32 s32, s3, 27
    s_add_u32 s32, s32, s33
    v_lshrrev_b32 v3, 5, v0
    v_and_b32 v4, 31, v0
    v_mul_u32_u24 v5, 1280, v3
    v_lshl_add_u32 v5, v4, 4, v5    ; row*1280 + 16j
    v_lshlrev_b32 v6, 3, v4
    v_sub_u32 v6, v5, v6            ; row*1280 + 8j
    s_mul_i32 s34, s31, 10240
    s_waitcnt lgkmcnt(0)
    """)
    stamp(a, 0)
    srd(a, 8, 4, 2048 * 1280); srd(a, 12, 28, WS_SIZE)
    a(f"""
    buffer_load_dwordx4 v[8:11], v5, s[8:11], s34 offen
    buffer_load_dwordx4 v[12:15], v5, s[8:11], s34 offen offset:512
    buffer_load_dwordx2 v[16:17], v6, s[8:11], s34 offen offset:1024
    s_mul_i32 s35, s32, 3
    v_and_b32 v7, 127, v0
    v_lshlrev_b32 v7, 1, v7
    """)
    PB = 20
    for k in range(3):
        a(f"""
        s_add_u32 s36, s35, {k}
        s_min_u32 s{40+k}, s36, 639
        s_lshl_b32 s36, s{40+k}, 8
        v_add_u32 v18, s36, v7
        s_lshl_b32 s36, s{40+k}, 1
        v_mov_b32 v19, s36
        """)
        for j, sb in enumerate((6, 16, 18, 20, 22, 24)):
            a(f"global_load_short_d16_hi v{PB+8*k+j}, v18, s[{sb}:{sb+1}]")
        a(f"global_load_short_d16_hi v{PB+8*k+6}, v19, s[26:27]")
    a(f"""
    s_mov_b32 s37, 0x3f803f80
    v_mov_b32 v44, 0
    v_mov_b32 v45, 0
    s_waitcnt vmcnt(21)
    """)
    stamp(a, 1)
    for i in range(10):
        a(f"v_dot2_f32_bf16 v44, v{8+i}, s37, v44")
        a(f"v_dot2_f32_bf16 v45, v{8+i}, v{8+i}, v45")
    for sh in ("quad_perm:[1,0,3,2]", "quad_perm:[2,3,0,1]", "row_half_mirror", "row_mirror"):
        a(f"v_add_f32_dpp v44, v44, v44 {sh} row_mask:0xf bank_mask:0xf")
        a(f"v_add_f32_dpp v45, v45, v45 {sh} row_mask:0xf bank_mask:0xf")
    a(f"""
    v_mov_b32 v46, v44
    v_mov_b32 v47, v45
    v_permlane16_swap_b32 v44, v46
    v_permlane16_swap_b32 v45, v47
    v_add_f32 v44, v44, v46
    v_add_f32 v45, v45, v47
    v_mul_f32 v44, {fbits(1/640)}, v44        ; mean
    v_mul_f32 v45, {fbits(1/640)}, v45
    v_fma_f32 v45, -v44, v44, v45
    v_max_f32 v45, 0, v45                     ; var
    v_cvt_pk_bf16_f32 v46, v44, v45
    v_and_b32 v45, 0xffff0000, v46
    v_lshlrev_b32 v44, 16, v46                ; bf16(mean)
    v_add_f32 v45, {fbits(1e-5)}, v45
    v_cvt_pk_bf16_f32 v45, v45, v45
    v_and_b32 v45, 0xffff0000, v45
    v_sqrt_f32 v45, v45
    v_cvt_pk_bf16_f32 v47, v44, v45           ; (m, s) packed
    v_and_b32 v45, 0xffff0000, v47
    v_rcp_f32 v45, v45
    """)
    for i in range(10):
        a(f"v_lshlrev_b32 v{48+2*i}, 16, v{8+i}")
        a(f"v_and_b32 v{49+2*i}, 0xffff0000, v{8+i}")
    for i in range(10):
        a(f"v_pk_add_f32 {vr(48+2*i,2)}, {vr(48+2*i,2)}, v[44:45] op_sel_hi:[1,0] neg_lo:[0,1] neg_hi:[0,1]")
    for i in range(10):
        a(f"v_pk_mul_f32 {vr(48+2*i,2)}, {vr(48+2*i,2)}, v[44:45] op_sel:[0,1] op_sel_hi:[1,1]")
    for i in range(10):
        a(f"v_cvt_pk_bf16_f32 v{8+i}, v{48+2*i}, v{49+2*i}")
    a(f"""
    v_mul_u32_u24 v5, {LN_S}, v3
    v_lshl_add_u32 v6, v4, 3, v5
    v_lshl_add_u32 v5, v4, 4, v5
    ds_write_b128 v5, v[8:11] offset:{LN0}
    ds_write_b128 v5, v[12:15] offset:{LN0+512}
    ds_write_b64 v6, v[16:17] offset:{LN0+1024}
    s_lshl_b32 s36, s31, 5
    s_add_u32 s36, s36, {WS_STATS}
    v_lshlrev_b32 v5, 2, v3
    v_cmp_eq_u32 vcc, 0, v4
    v_bfe_u32 v6, v2, 2, 2                    ; s>>2
    v_mul_u32_u24 v6, {LN_S}, v6
    v_and_b32 v18, 3, v2
    v_lshl_add_u32 v6, v18, 3, v6
    v_lshrrev_b32 v18, 4, v2
    v_lshl_add_u32 v6, v18, 5, v6
    s_lshl_b32 s38, s30, 7
    v_add_u32 v6, s38, v6
    s_lshl_b32 s38, s30, 18                   ; wave*64*4096
    v_lshl_add_u32 v46, v2, 12, s38
    s_lshl_b32 s39, s31, 4
    s_add_u32 s39, s39, {WS_UT}
    s_waitcnt vmcnt(0)
    s_and_saveexec_b64 s[44:45], vcc
    buffer_store_dword v47, v5, s[12:15], s36 offen
    s_mov_b64 exec, s[44:45]
    s_waitcnt lgkmcnt(0)
    s_barrier
    """)
    for n in range(3):
        a(f"ds_read_b64_tr_b16 {vr(8+4*n,2)}, v6 offset:{LN0+512*n}")
        a(f"ds_read_b64_tr_b16 {vr(10+4*n,2)}, v6 offset:{LN0+512*n+4*LN_S}")
    a(f"""
    s_waitcnt lgkmcnt(4)
    buffer_store_dwordx4 v[8:11], v46, s[12:15], s39 offen
    s_add_u32 s39, s39, {256*4096}
    s_waitcnt lgkmcnt(2)
    buffer_store_dwordx4 v[12:15], v46, s[12:15], s39 offen
    s_add_u32 s39, s39, {256*4096}
    s_waitcnt lgkmcnt(0)
    s_cmp_ge_u32 s30, 2
    s_cbranch_scc1 {L}_k0
    buffer_store_dwordx4 v[16:19], v46, s[12:15], s39 offen
    {L}_k0:
    s_cmp_ge_u32 s33, 27
    s_cbranch_scc1 {L}_idle
    s_cmp_ge_u32 s32, 214
    s_cbranch_scc1 {L}_done
    """)
    stamp(a, 2)
    for k in range(3):
        p = PB + 8 * k
        a(f"""
        v_mul_f32 v44, {fbits(LOG2E)}, v{p+6}
        v_mov_b32 v46, {fbits(LOG2E)}
        v_fma_f32 v45, v{p+6}, v46, -v44
        v_fmac_f32 v45, 0x32a57060, v{p+6}
        v_exp_f32 v44, v44
        v_mul_f32 v45, {fbits(0.6931471805599453)}, v45
        v_fma_f32 v44, v44, v45, v44
        v_cvt_pk_bf16_f32 v44, v44, v44
        v_and_b32 v{p+6}, 0xffff0000, v44           ; dt
        v_mul_f32 v{p}, v{p}, v{p+6}
        v_mul_f32 v{p+1}, v{p+1}, v{p+6}
        v_mul_f32 v{p}, {fbits(LOG2E)}, v{p}
        v_mul_f32 v{p+1}, 0.15915494, v{p+1}
        """)
    a(f"""
    s_and_b32 s36, s30, 1
    s_lshl_b32 s36, s36, 8
    s_add_u32 m0, s36, {TB0}
    s_cmp_ge_u32 s30, 2
    s_cbranch_scc1 {L}_pa
    """)
    def wr(src, ch, row, neg=False, t=[0]):
        r = 60 + (t[0] & 3); t[0] += 1
        a(f"v_cvt_pk_bf16_f32 v{r}, v{src}, {'-' if neg else ''}v{src+1}")
        rows = row if isinstance(row, list) else [row]
        for x in rows:
            off = ch * TCH + x * TS
            assert off < 65536 or True
            a(f"ds_write_addtid_b32 v{r} offset:{off}") if off < 65536 else None
    for k in range(3):
        p = PB + 8 * k
        if k: a(f"s_add_u32 m0, m0, {TCH}")
        Z8, = (44,)
        c = [[46, 48, 50, 52], [64, 66, 68, 70]]
        zbases(a, [(Z8, 8), (c[0][1], 64)], p, p + 1, 56)
        a(f"v_mov_b32 v58, 0x00003f80")
        a(f"ds_write_addtid_b32 v58 offset:{32*TS}")
        cmuls(a, [(c[0][2], c[0][1], c[0][1]), (c[0][0], Z8, Z8)])
        wr(Z8, 0, 33); wr(c[0][1], 0, 40)
        cmuls(a, [(c[0][3], c[0][2], c[0][1])])
        wr(c[0][0], 0, 34); wr(c[0][2], 0, 48); wr(c[0][3], 0, 56)
        for s in range(1, 8):
            src, dst = c[(s + 1) & 1], c[s & 1]
            lst = [(dst[q], src[q], Z8) for q in range(4) if q or s <= 5]
            cmuls(a, lst)
            for q in range(4):
                if q: wr(dst[q], 0, 32 + 8 * q + s)
                elif s <= 5: wr(dst[q], 0, 32 + s + 2)
    a(f"s_branch {L}_mm\n{L}_pa:")
    for k in range(3):
        p = PB + 8 * k
        if k: a(f"s_add_u32 m0, m0, {TCH}")
        Z1, Z8, Z256 = 44, 46, 48
        T = [64 + 2 * i for i in range(12)]
        zbases(a, [(Z1, 1), (Z8, 8), (Z256, 256)], p, p + 1, 56)
        a(f"v_pk_mul_f32 {vr(p+2,2)}, {vr(p+2,2)}, {vr(p+6,2)} op_sel_hi:[1,0]")
        cmuls(a, [(T[0], p + 4, p + 2), (50, Z1, Z1)])
        wr(T[0], 0, rho(0, 0), True)
        cmuls(a, [(T[1], T[0], Z1), (T[2], T[0], 50), (52, 50, 50), (T[8], T[0], Z256)])
        wr(T[1], 0, rho(1, 0), True); wr(T[2], 0, rho(2, 0), True); wr(T[8], 0, [rho(0, 1), rho(1, 1)], True)
        cmuls(a, [(T[3], T[1], 50), (T[4], T[0], 52), (T[5], T[1], 52), (T[6], T[2], 52), (T[9], T[2], Z256), (T[10], T[8], Z8)])
        for i in (3, 4, 5, 6): wr(T[i], 0, rho(i, 0), True)
        wr(T[9], 0, rho(2, 1), True); wr(T[10], 0, rho(7, 1), True)
        cmuls(a, [(T[7], T[3], 52), (T[0], T[4], Z256), (T[1], T[6], Z256), (T[2], T[8], Z256), (T[5], T[10], Z256)])
        wr(T[7], 0, rho(7, 0), True); wr(T[0], 0, [rho(3, 1), rho(4, 1), rho(5, 1)], True); wr(T[1], 0, rho(6, 1), True)
        wr(T[2], 0, rho(8, 0), True); wr(T[5], 0, rho(10, 0), True)
        cmuls(a, [(T[3], T[0], Z256), (T[8], T[2], Z256), (T[10], T[5], Z256)])
        wr(T[3], 0, rho(9, 0), True); wr(T[8], 0, rho(8, 1), True); wr(T[10], 0, rho(10, 1), True)
        cmuls(a, [(T[0], T[3], Z256), (T[2], T[8], Z256), (T[5], T[10], Z256)])
        wr(T[0], 0, rho(9, 1), True); wr(T[2], 0, rho(11, 0), True); wr(T[5], 0, rho(12, 0), True)
        x, y, x2, y2 = T[2], T[5], T[8], T[10]
        for (i, h) in ((11, 1), (13, 0), (13, 1)):
            cmuls(a, [(x2, x, Z256), (y2, y, Z256)])
            wr(x2, 0, rho(i, h), True); wr(y2, 0, rho(i + 1, h), True)
            x, y, x2, y2 = x2, y2, x, y
    a(f"""
    {L}_mm:
    v_and_b32 v4, 31, v2
    v_lshrrev_b32 v5, 5, v2
    v_mul_u32_u24 v6, {TS}, v4
    v_lshl_add_u32 v6, v5, 4, v6
    s_mul_i32 s36, s30, {TCH}
    s_add_u32 s36, s36, {TB0}
    v_add_u32 v6, s36, v6
    s_waitcnt lgkmcnt(0)
    s_barrier
    s_cmp_ge_u32 s30, 3
    s_cbranch_scc1 {L}_done
    """)
    D = 64; FA = 8; FB = 24
    stamp(a, 3)
    def rd(s):
        a(f"ds_read_b128 {vr(FA+4*(s&3),4)}, v6 offset:{32*s}")
        a(f"ds_read_b128 {vr(FB+4*(s&3),4)}, v6 offset:{32*TS+32*s}")
    for s in range(3): rd(s)
    for s in range(16):
        if s + 3 < 16: rd(s + 3)
        a(f"s_waitcnt lgkmcnt({2*min(3, 15-s)})")
        a(f"v_mfma_f32_32x32x16_bf16 {vr(D,16)}, {vr(FA+4*(s&3),4)}, {vr(FB+4*(s&3),4)}, {vr(D,16) if s else 0}")
    a(f"""
    s_cmp_eq_u32 s30, 1
    s_cselect_b32 s36, s41, s40
    s_cmp_eq_u32 s30, 2
    s_cselect_b32 s36, s42, s36
    s_lshl_b32 s36, s36, 12
    s_add_u32 s36, s36, {WS_K}
    v_lshlrev_b32 v4, 2, v4
    v_lshl_add_u32 v4, v5, 7, v4
    v_sub_u32 v4, 252, v4
    v_and_b32 v5, 1, v2
    v_cmp_eq_u32 vcc, 0, v5
    """)
    SS = 1024
    def st(r, sig, lam0):
        a(f"buffer_store_dword v{r}, v4, s[12:15], s36 offen offset:{sig*SS + 768 - 2*lam0}")
    for sg in range(4): a(f"v_cvt_pk_bf16_f32 v{8+sg}, v{D+4+sg}, v{D+sg}")
    a(f"""
    v_cvt_pk_bf16_f32 v12, v{D+9}, v{D+8}
    v_cvt_pk_bf16_f32 v13, v{D+10}, v{D+8}
    v_cvt_pk_bf16_f32 v14, v{D+10}, v{D+9}
    v_cndmask_b32 v20, v{D+12}, v{D+11}, vcc
    v_cndmask_b32 v21, v{D+14}, v{D+13}, vcc
    v_cvt_pk_bf16_f32 v15, v20, v{D+11}
    v_cvt_pk_bf16_f32 v16, v{D+12}, v{D+11}
    v_cvt_pk_bf16_f32 v17, v21, v{D+13}
    v_cvt_pk_bf16_f32 v18, v{D+14}, v{D+13}
    """)
    for sg in range(4): st(8 + sg, sg, 0)
    for sg in range(4): st((12, 12, 13, 14)[sg], sg, 128)
    for sg in range(4): st((15, 16, 16, 16)[sg], sg, 256)
    for sg in range(4): st((17, 18, 18, 18)[sg], sg, 384)
    a(f"""
    {L}_done:
    """)
    stamp_dump(a, 0, 4)
    a(f"""
    s_endpgm
    {L}_idle:
    s_load_dwordx2 s[6:7], s[0:1], 80
    s_sub_u32 s34, s33, 27
    s_lshl_b32 s34, s34, 3
    s_add_u32 s34, s34, s3
    s_cmp_ge_u32 s34, 27
    s_cbranch_scc1 {L}_end
    s_waitcnt lgkmcnt(0)
    """)
    emit_colsum(a, L, 6, 12, 34, WS_CS, TB0)
    stamp_dump(a, 0, 4)
    a(f"{L}_end:\ns_endpgm")
    return dict(label=L, grid=256, block=256, lds=TB0 + 3 * TCH, vgpr=96, agpr=0)
```

```python
from asmx import *
from layout import *
from colsum import emit_colsum

KS = 1216
CH = 64 + 4096 + 4 * KS
B0 = 1024
def emit_B(a, L):
    kernel_head(a, L)
    a(f"""
    s_cmp_ge_u32 s2, 256
    s_cbranch_scc1 {L}_end
    s_load_dwordx2 s[4:5], s[0:1], 64
    s_load_dwordx2 s[6:7], s[0:1], 88
    s_load_dwordx2 s[28:29], s[0:1], 120
    v_lshrrev_b32 v1, 6, v0
    v_and_b32 v2, 63, v0            ; lane
    s_and_b32 s3, s2, 7
    s_lshr_b32 s33, s2, 3
    v_readfirstlane_b32 s30, v1     ; wave
    s_mul_i32 s32, s3, 27
    s_add_u32 s32, s32, s33         ; c
    v_lshlrev_b32 v3, 4, v2         ; lane*16
    s_waitcnt lgkmcnt(0)
    """)
    stamp(a, 0)
    srd(a, 12, 28, WS_SIZE)
    a(f"""
    s_cmp_ge_u32 s33, 27
    s_cbranch_scc1 {L}_idle
    s_cmp_ge_u32 s32, 214
    s_cbranch_scc1 {L}_end
    s_mul_i32 s35, s32, 3
    s_lshl_b32 s36, s30, 10         ; w*1024
    s_mul_i32 s37, s30, {KS}
    """)
    for k in range(3):
        a(f"""
        s_add_u32 s38, s35, {k}
        s_min_u32 s{40+k}, s38, 639
        s_lshl_b32 s38, s{40+k}, 12
        s_add_u32 s38, s38, s36
        s_add_u32 m0, s36, {B0 + k*CH + 64}
        s_add_u32 s39, s38, {WS_K}
        buffer_load_dwordx4 v3, s[12:15], s38 offen lds
        s_add_u32 m0, s37, {B0 + k*CH + 4160}
        s_lshl_b32 s38, s{40+k}, 1
        buffer_load_dwordx4 v3, s[12:15], s39 offen lds
        v_mov_b32 v{4+k}, s38
        """)
    a(f"""
    v_lshlrev_b32 v7, 2, v2
    s_add_u32 s38, s36, {WS_STATS}
    s_sub_u32 s39, {WS_STATS + 7*1024}, s36
    """)
    for i in range(4): a(f"buffer_load_dword v{8+i}, v7, s[12:15], s38 offen offset:{256*i}")
    for i in range(4): a(f"buffer_load_dword v{12+i}, v7, s[12:15], s39 offen offset:{256*i}")
    for k in range(3): a(f"global_load_short_d16_hi v{4+k}, v{4+k}, s[4:5]")
    a(f"""
    v_mov_b32 v16, 0
    s_add_u32 s38, s37, {B0 + 4160 + 1024}
    v_add_u32 v17, s38, v7
    v_add_u32 v18, {B0 - 192}, v7
    v_cmp_gt_u32 vcc, 48, v2
    v_cndmask_b32 v17, v18, v17, vcc
    v_lshlrev_b32 v18, 2, v0
    ds_write_b32 v18, v16
    """)
    for k in range(3): a(f"ds_write_b32 v17, v16 offset:{k*CH}")
    vA, vS, vL, vUS, vUL, vST, vSL, vCW = 20, 21, 22, 23, 24, 25, 26, 27
    iA, iS, iL = 28, 29, 30
    a(f"""
    v_and_b32 v17, 3, v2                    ; sigma
    v_mul_u32_u24 v{iA}, {KS}, v17
    v_bfe_u32 v18, v2, 2, 3                 ; r
    v_lshlrev_b32 v18, 4, v18
    v_sub_u32 v{iA}, v{iA}, v18
    v_lshrrev_b32 v19, 5, v2                ; kh
    v_lshl_add_u32 v{iA}, v19, 4, v{iA}
    v_add_u32 v{iA}, {B0 + 4160 + 2*552 - 96}, v{iA}
    v_bfe_u32 v18, v2, 2, 2
    v_add_u32 v18, v18, v17
    v_lshrrev_b32 v17, 4, v2
    v_lshl_add_u32 v18, v17, 2, v18
    v_lshlrev_b32 v18, 3, v18
    s_lshl_b32 s38, s30, 9
    s_add_u32 s39, s38, {B0 + 64 + 8*41 - 384}
    v_add_u32 v{iS}, s39, v18
    s_sub_u32 s39, {B0 + 64 + 8*41 - 384 + 7*512}, s38
    v_add_u32 v{iL}, s39, v18
    v_lshlrev_b32 v17, 1, v2
    s_add_u32 s39, s38, {B0 + 64}
    v_add_u32 v{vUS}, s39, v17
    s_sub_u32 s39, {B0 + 64 + 7*512}, s38
    v_add_u32 v{vUL}, s39, v17
    v_and_b32 v17, 31, v2
    v_lshlrev_b32 v17, 1, v17
    v_mul_u32_u24 v18, 40960, v19
    v_add_u32 v17, v17, v18
    s_mul_i32 s38, s30, {8*40960}
    v_add_u32 v{vST}, s38, v17
    s_sub_u32 s38, {7*8*40960}, s38
    v_add_u32 v{vSL}, s38, v17
    s_lshl_b32 s38, s30, 4
    v_mov_b32 v{vCW}, s38
    s_sub_u32 s38, 112, s38
    v_mov_b32 v{vCW+4}, s38
    s_waitcnt vmcnt(15) lgkmcnt(0)
    s_barrier
    """)
    vCL = vCW + 4
    stamp(a, 1)
    FA, FS, FL = 32, 48, 64
    DS, DL = 80, 96
    T = 112
    M_, S_ = 144, 152
    H0 = 160
    U = 168
    def rdA(j, k): a(f"ds_read_b128 {vr(FA+4*j,4)}, v{vA} offset:{k*CH + 32*(3-j)}")
    def rdB(F, v, j, k):
        a(f"ds_read_b64_tr_b16 {vr(F+4*j,2)}, v{v} offset:{k*CH + 128*(3-j)}")
        a(f"ds_read_b64_tr_b16 {vr(F+4*j+2,2)}, v{v} offset:{k*CH + 128*(3-j) + 32}")
    def mf(D, j, F, first=False): a(f"v_mfma_f32_32x32x16_bf16 {vr(D,16)}, {vr(FA+4*j,4)}, {vr(F+4*j,4)}, {0 if first else vr(D,16)}")
    def reset(): a(f"v_mov_b32 v{vA}, v{iA}\nv_mov_b32 v{vS}, v{iS}\nv_mov_b32 v{vL}, v{iL}")
    def adv(s=True):
        a(f"v_subrev_u32 v{vA}, 128, v{vA}\nv_subrev_u32 v{vL}, 512, v{vL}")
        if s: a(f"v_subrev_u32 v{vS}, 512, v{vS}")
    reset()
    for j in range(4): rdA(j, 0); rdB(FL, vL, j, 0); rdB(FS, vS, j, 0)
    for k in range(3):
        def joint(first):
            adv()
            for j in range(4):
                a("s_waitcnt lgkmcnt(15)")
                mf(DL, j, FL, first and j == 0); mf(DS, j, FS, first and j == 0)
                rdA(j, k); rdB(FL, vL, j, k); rdB(FS, vS, j, k)
        joint(True)
        a(f"""
        s_mov_b32 s44, s30
        s_cmp_eq_u32 s44, 0
        s_cbranch_scc1 {L}_j{k}e
        {L}_j{k}:
        """)
        joint(False)
        a(f"""
        s_sub_u32 s44, s44, 1
        s_cmp_lg_u32 s44, 0
        s_cbranch_scc1 {L}_j{k}
        {L}_j{k}e:
        s_lshl_b32 s44, s30, 1
        s_sub_u32 s44, 6, s44
        s_cmp_eq_u32 s44, 0
        s_waitcnt lgkmcnt(0)
        s_cbranch_scc1 {L}_s{k}e
        {L}_s{k}:
        """)
        adv(False)
        for j in range(4):
            a("s_waitcnt lgkmcnt(9)")
            mf(DL, j, FL); rdA(j, k); rdB(FL, vL, j, k)
        a(f"""
        s_sub_u32 s44, s44, 1
        s_cmp_lg_u32 s44, 0
        s_cbranch_scc1 {L}_s{k}
        {L}_s{k}e:
        """)
        if k == 0: a("s_waitcnt vmcnt(0)\ns_barrier")
        reset()
        for j in range(4):
            n = 9 - 3 * j + (5 * j if k < 2 else 0)
            a(f"s_waitcnt lgkmcnt({min(n,15)})")
            mf(DL, j, FL)
            if k < 2: rdA(j, k + 1); rdB(FL, vL, j, k + 1); rdB(FS, vS, j, k + 1)
        stamp(a, 2 + 2 * k)
        if k < 2: a("s_waitcnt lgkmcnt(4)")
        for i in range(4): a(f"ds_read_u16_d16_hi v{U+i}, v{vUS} offset:{k*CH + 128*i}")
        for i in range(4): a(f"ds_read_u16_d16_hi v{U+4+i}, v{vUL} offset:{k*CH + 128*i}")
        if k == 0:
            for i in range(8):
                a(f"v_lshlrev_b32 v{M_+i}, 16, v{8+i}\nv_and_b32 v{S_+i}, 0xffff0000, v{8+i}")
        def level(dst, hi, lo):
            for t in range(2):
                for i in range(1, 4): a(f"v_add_f32_dpp v{dst[t][i]}, v{hi[t][i-1]}, v{lo[t][i]} wave_ror:1 row_mask:0xf bank_mask:0xf")
                a(f"v_add_f32_dpp v{dst[t][0]}, v{hi[t][0]}, v{lo[t][0]} wave_shr:1 row_mask:0xf bank_mask:0xf bound_ctrl:0")
            for t in range(2):
                for i in range(1, 4): a(f"v_add_f32_dpp v{dst[t][i]}, v{hi[t][i]}, v{lo[t][i]} wave_shr:1 row_mask:0xf bank_mask:0xf")
        Dr = lambda sg: [[D + 4 * i + sg for i in range(4)] for D in (DS, DL)]
        T2 = [[T + 4 * t + i for i in range(4)] for t in range(2)]
        T1 = [[T + 8 + 4 * t + i for i in range(4)] for t in range(2)]
        Y = [[T + 16 + 4 * t + i for i in range(4)] for t in range(2)]
        level(T2, Dr(3), Dr(2))
        a("s_waitcnt lgkmcnt(0)")
        for t, D in enumerate((DS, DL)):
            for i in range(4):
                a(f"v_fma_f32 v{D+4*i}, v{U+4*t+i}, v{4+k}, v{D+4*i}")
        level(T1, T2, Dr(1))
        for t, D in enumerate((DS, DL)):
            for i in range(4):
                a(f"v_fma_f32 v{U+4*t+i}, v{U+4*t+i}, v{S_+4*t+i}, v{M_+4*t+i}")
        a(f"""
        s_mov_b32 exec_lo, 0
        s_brev_b32 exec_hi, 1
        """)
        for t, (D, v) in enumerate(((DS, vCW), (DL, vCL))):
            a(f"ds_write_b32 v{v}, v{T1[t][3]} offset:{k*256 + 16}")
            a(f"ds_write_b32 v{v}, v{T2[t][3]} offset:{k*256 + 20}")
            a(f"ds_write_b32 v{v}, v{D+15} offset:{k*256 + 24}")
        a("s_mov_b64 exec, -1")
        for t, D in enumerate((DS, DL)):
            for i in range(4):
                a(f"v_add_f32 v{D+4*i}, v{D+4*i}, v{U+4*t+i}")
        Y[0][0] = H0 + 2 * k; Y[1][0] = H0 + 2 * k + 1
        level(Y, T1, Dr(0))
        a(f"""
        s_lshl_b32 s45, s{40+k}, 6
        s_add_u32 s45, s45, {WS_H + 81920}
        s_add_u32 s46, s45, 81920
        s_add_u32 s47, s46, 81920
        """)
        for i in range(1, 4):
            a(f"v_cvt_pk_bf16_f32 v{T+i}, v{Y[0][i]}, v{Y[1][i]}")
        for i in range(1, 4):
            a(f"buffer_store_short v{T+i}, v{vST}, s[12:15], s{44+i} offen")
            a(f"buffer_store_short_d16_hi v{T+i}, v{vSL}, s[12:15], s{44+i} offen")
        stamp(a, 3 + 2 * k)
    a(f"""
    v_min_u32 v17, 3, v2
    v_lshl_add_u32 v18, v17, 2, v{vCL}
    v_lshl_add_u32 v17, v17, 2, v{vCW}
    s_waitcnt lgkmcnt(0)
    s_barrier
    """)
    for k in range(3):
        a(f"ds_read_b32 v{T+2*k}, v17 offset:{k*256}\nds_read_b32 v{T+2*k+1}, v18 offset:{k*256}")
    for k in range(3):
        a(f"""
        s_lshl_b32 s45, s{40+k}, 6
        s_add_u32 s45, s45, {WS_H}
        s_waitcnt lgkmcnt({4-2*k})
        v_add_f32 v{T+2*k}, v{T+2*k}, v{H0+2*k}
        v_add_f32 v{T+2*k+1}, v{T+2*k+1}, v{H0+2*k+1}
        v_cvt_pk_bf16_f32 v{T+2*k}, v{T+2*k}, v{T+2*k+1}
        buffer_store_short v{T+2*k}, v{vST}, s[12:15], s45 offen
        buffer_store_short_d16_hi v{T+2*k}, v{vSL}, s[12:15], s45 offen
        """)
    stamp_dump(a, 1, 8)
    a(f"""
    s_endpgm
    {L}_idle:
    s_sub_u32 s34, s33, 27
    s_lshl_b32 s34, s34, 3
    s_add_u32 s34, s34, s3
    s_cmp_ge_u32 s34, 27
    s_cbranch_scc1 {L}_end
    """)
    emit_colsum(a, L, 6, 12, 34, WS_CS + 1728 * 4, 0)
    stamp_dump(a, 1, 8)
    a(f"{L}_end:\ns_endpgm")
    return dict(label=L, grid=256, block=256, lds=B0 + 3 * CH, vgpr=176, agpr=0)
```

```python
from asmx import *
from layout import *
from phA import fbits

WROW = 224
WMAT = 64 * WROW + 128
WB = 2 * 64 * WROW + 128
NB = 4
HR0 = NB * WB
CS0 = HR0 + 4 * 8192
WOFF = [0, 0, 1024, 0, 1024, 0, 1024]
C1 = -2.302208198; C2 = -0.1029432397

def emit_C(a, L, stats="dot2"):
    kernel_head(a, L)
    a(f"""
    s_cmp_ge_u32 s2, 256
    s_cbranch_scc1 {L}_end
    s_load_dwordx4 s[4:7], s[0:1], 80
    s_load_dwordx2 s[28:29], s[0:1], 120
    v_lshrrev_b32 v1, 6, v0
    v_and_b32 v2, 63, v0
    s_and_b32 s3, s2, 7
    s_lshr_b32 s33, s2, 3
    v_readfirstlane_b32 s30, v1
    s_and_b32 s31, s3, 1
    s_lshl_b32 s31, s31, 3
    s_and_b32 s34, s33, 7
    s_add_u32 s31, s31, s34          ; rb
    s_lshr_b32 s32, s3, 1
    s_lshl_b32 s32, s32, 2
    s_lshr_b32 s34, s33, 3
    s_add_u32 s32, s32, s34          ; fs
    s_mul_i32 s32, s32, 27
    s_lshr_b32 s32, s32, 2           ; u0
    s_lshl_b32 s31, s31, 2
    s_add_u32 s31, s31, s30          ; tb32
    v_lshlrev_b32 v3, 4, v2          ; lane*16
    s_and_b32 s35, s30, 1
    s_mul_i32 s36, s35, {32*3456}
    s_lshl_b32 s37, s32, 5
    s_add_u32 s36, s36, s37
    """)
    VO = 8
    for n in range(7):
        a(f"""
        v_add_u32 v4, {64*n}, v2
        v_mul_u32_u24 v5, 4682, v4
        v_lshrrev_b32 v5, 16, v5
        v_mul_u32_u24 v6, 14, v5
        v_sub_u32 v6, v4, v6
        v_mul_u32_u24 v5, 3456, v5
        v_lshl_add_u32 v5, v6, 4, v5
        s_sub_u32 s37, s36, {WOFF[n]}
        v_add_u32 v{VO+n}, s37, v5
        """)
    a(f"""
    v_cmp_le_u32 vcc, 28, v2
    v_add_u32 v4, {6912 - 28*16}, v3
    s_lshl_b32 s38, s32, 6
    s_add_u32 s38, s38, {WS_CS}
    v_cndmask_b32 v4, v3, v4, vcc
    s_mul_i32 s37, s31, 40960
    s_add_u32 s37, s37, {WS_H}
    s_waitcnt lgkmcnt(0)
    s_cmp_ge_u32 s30, 2
    s_cselect_b32 s8, s6, s4
    s_cselect_b32 s9, s7, s5
    s_cselect_b32 s39, {WMAT}, 0
    s_mov_b32 s10, {640*3456}
    s_mov_b32 s11, 0x00020000
    s_add_u32 s16, s28, s37
    s_addc_u32 s17, s29, 0
    s_mov_b32 s18, 40960
    s_mov_b32 s19, 0x00020000
    """)
    stamp(a, 0)
    srd(a, 12, 28, WS_SIZE)
    sMW, sMH, sOW, sOH, sRW, sIT, sMW0 = 40, 41, 42, 43, 44, 45, 46
    a(f"""
    s_mul_i32 s35, s35, {32*WROW}
    s_add_u32 s{sMW0}, s39, s35
    s_mov_b32 s{sMW}, s{sMW0}
    s_lshl_b32 s{sMH}, s30, 13
    s_add_u32 s{sMH}, s{sMH}, {HR0}
    s_mov_b32 s{sOW}, 0
    s_mov_b32 s{sOH}, 0
    s_mov_b32 m0, {CS0}
    """)
    seq = []
    a("buffer_load_dwordx4 v4, s[12:15], s38 offen lds")
    def mH(): a(f"s_mov_b32 m0, s{sMH}")
    def mW(n): a(f"s_add_u32 m0, s{sMW}, {1024*n}")
    def dmaH(j, m=True):
        if m: mH()
        a(f"buffer_load_dwordx4 v3, s[16:19], s{sOH} offen offset:{1024*j} lds")
    def dmaW(ns, m=True):
        for n in ns:
            if m and WOFF[n] == 0: mW(n)
            a(f"buffer_load_dwordx4 v{VO+n}, s[8:11], s{sOW} offen offset:{WOFF[n]} lds")
    def advW():
        a(f"s_add_u32 s{sMW}, s{sMW}, {WB}\ns_add_u32 s{sOW}, s{sOW}, {64*3456}")
    dmaH(0); seq.append(("h", 0))
    dmaW(range(7)); seq += [("w", 0, n) for n in range(7)]
    for j in (1, 2, 3): dmaH(j, j == 1); seq.append(("h", j))
    advW(); dmaW(range(7)); seq += [("w", 1, n) for n in range(7)]
    a(f"s_xor_b32 s{sMH}, s{sMH}, 4096\ns_add_u32 s{sOH}, s{sOH}, 4096")
    for j in range(4): dmaH(j, j == 0); seq.append(("h", 4 + j))
    advW(); dmaW(range(7)); seq += [("w", 2, n) for n in range(7)]
    advW(); dmaW([0]); seq.append(("w", 3, 0))
    a(f"s_xor_b32 s{sMH}, s{sMH}, 4096\ns_add_u32 s{sOH}, s{sOH}, 4096")
    n0 = len(seq) - 1 - seq.index(("w", 0, 6))
    sim = list(seq); NH = [99] * 4; NW = 99
    for c in range(10):
        for j in range(4):
            ks = 4 * c + j
            NH[j] = min(NH[j], len(sim) - 1 - sim.index(("h", ks + 1)))
            sim.append(("h", ks + 8))
            if j == 3:
                NW = min(NW, len(sim) - 1 - sim.index(("w", c + 1, 6)))
                sim.append(("w", c + 4, 0))
            else: sim += [("w", c + 3, 1 + 2 * j), ("w", c + 3, 2 + 2 * j)]
    vW0, vW, vH = 15, 16, 17
    SUM, SQ = 18, 19
    FB = 20
    FA = 28
    ACC = 64
    ST = 56
    a(f"""
    v_lshrrev_b32 v4, 4, v2                ; G
    v_and_b32 v5, 1, v4
    v_lshrrev_b32 v4, 1, v4
    v_bfe_u32 v6, v2, 2, 2
    v_lshl_add_u32 v6, v4, 3, v6           ; k = 8*(G>>1) + (s>>2)
    v_and_b32 v7, 3, v2
    v_lshlrev_b32 v7, 3, v7
    v_mul_u32_u24 v{vW0}, {WROW}, v6
    v_mul_u32_u24 v4, {WMAT}, v5
    v_add3_u32 v{vW0}, v{vW0}, v4, v7
    v_mov_b32 v{vW}, v{vW0}
    v_lshl_add_u32 v{vH}, v6, 6, v7
    v_lshl_add_u32 v{vH}, v5, 5, v{vH}
    v_add_u32 v{vH}, s{sMH}, v{vH}
    s_mov_b32 s{sRW}, 0
    s_mov_b32 s{sIT}, 10
    s_mov_b32 s47, 0x3f803f80
    v_mov_b32 v{SUM}, 0
    v_mov_b32 v{SQ}, 0
    """)
    for i in range(112): a(f"v_mov_b32 v{ACC+i}, 0")
    if stats == "mfma4":
        for i in range(8): a(f"v_mov_b32 v{ST+i}, 0")
        a(f"v_mov_b32 v4, s47\nv_mov_b32 v5, s47")
    def RA(j, u):
        for i in range(2): a(f"ds_read_b64_tr_b16 {vr(FA+4*u+2*i,2)}, v{vW} offset:{j*16*WROW + i*4*WROW + u*32}")
    def RB(slot, par):
        for i in range(2): a(f"ds_read_b64_tr_b16 {vr(FB+4*par+2*i,2)}, v{vH} offset:{slot*1024 + i*256}")
    a(f"s_waitcnt vmcnt({n0})\ns_barrier")
    stamp(a, 1)
    RA(0, 0); RB(0, 0)
    for u in range(1, 7): RA(0, u)
    a(f"{L}_loop:")
    for j in range(4):
        par = j & 1
        B = FB + 4 * par
        def M(u): a(f"v_mfma_f32_32x32x16_bf16 {vr(ACC+16*u,16)}, {vr(FA+4*u,4)}, {vr(B,4)}, {vr(ACC+16*u,16)}")
        def S(q):
            if stats == "dot2":
                a(f"v_dot2_f32_bf16 v{SUM}, v{B+q}, s47, v{SUM}")
                a(f"v_dot2_f32_bf16 v{SQ}, v{B+q}, v{B+q}, v{SQ}")
            elif stats == "mfma4":
                if q < 2: a(f"v_mfma_f32_4x4x4_16b_bf16 {vr(ST,4)}, {vr(B+2*q,2)}, {vr(B+2*q,2)}, {vr(ST,4)}")
                else: a(f"v_mfma_f32_4x4x4_16b_bf16 {vr(ST+4,4)}, v[4:5], {vr(B+2*(q-2),2)}, {vr(ST+4,4)}")
        a("s_waitcnt lgkmcnt(6)")
        M(0)
        if j < 3:
            RA(j + 1, 0)
            a(f"s_waitcnt vmcnt({NH[j]})"); RB(j + 1, par ^ 1)
            M(1); mH(); RA(j + 1, 1); dmaH(j, False)
            M(2); RA(j + 1, 2); S(0)
            M(3); RA(j + 1, 3); S(1)
            a("s_waitcnt lgkmcnt(10)")
            M(4); mW(1 + 2 * j); RA(j + 1, 4); dmaW([1 + 2 * j, 2 + 2 * j], False)
            M(5); RA(j + 1, 5); S(2)
            M(6); RA(j + 1, 6); S(3)
        else:
            a(f"v_xor_b32 v{vH}, 4096, v{vH}")
            a(f"s_add_u32 s{sRW}, s{sRW}, {WB}\ns_cmp_eq_u32 s{sRW}, {NB*WB}\ns_cselect_b32 s{sRW}, 0, s{sRW}")
            a(f"s_waitcnt vmcnt({NH[j]})"); RB(0, par ^ 1)
            M(1); mH(); a(f"v_add_u32 v{vW}, s{sRW}, v{vW0}"); dmaH(j, False); S(0)
            M(2); S(1)
            a(f"s_waitcnt vmcnt({NW}) lgkmcnt(2)\ns_barrier")
            RA(0, 0); RA(0, 1)
            M(3); RA(0, 2); RA(0, 3)
            M(4); RA(0, 4)
            a(f"s_add_u32 s{sMW}, s{sMW}, {WB}\ns_add_u32 s{sOW}, s{sOW}, {64*3456}")
            a(f"s_cmp_ge_u32 s{sMW}, {NB*WB}\ns_cselect_b32 s{sMW}, s{sMW0}, s{sMW}")
            M(5); mW(0); RA(0, 5); dmaW([0], False); S(2)
            a(f"s_xor_b32 s{sMH}, s{sMH}, 4096\ns_add_u32 s{sOH}, s{sOH}, 4096")
            M(6); RA(0, 6); S(3)
    a(f"""
    s_sub_u32 s{sIT}, s{sIT}, 1
    s_cmp_lg_u32 s{sIT}, 0
    s_cbranch_scc1 {L}_loop
    """)
    stamp(a, 2)
    vC = 15
    CSR = 24
    a(f"""
    v_lshrrev_b32 v4, 5, v2
    v_lshlrev_b32 v{vC}, 4, v4
    v_add_u32 v{vC}, {CS0}, v{vC}
    s_waitcnt lgkmcnt(0)
    """)
    def RC(u):
        b = CSR + 16 * (u & 1)
        for m in range(2):
            for j in range(2): a(f"ds_read_b128 {vr(b+8*m+4*j,4)}, v{vC} offset:{448*m + 64*u + 32*j}")
    RC(0)
    if stats == "mfma4":
        a(f"""
        v_and_b32 v4, 3, v2
        v_cmp_eq_u32 vcc, 1, v4
        v_cndmask_b32 v{SQ}, v{ST}, v{ST+1}, vcc
        v_cmp_eq_u32 vcc, 2, v4
        v_cndmask_b32 v{SQ}, v{SQ}, v{ST+2}, vcc
        v_cmp_eq_u32 vcc, 3, v4
        v_cndmask_b32 v{SQ}, v{SQ}, v{ST+3}, vcc
        v_mov_b32 v{SUM}, v{ST+4}
        """)
    KK, MM = 20, 22
    a(f"""
    v_mov_b32 v4, v{SUM}
    v_mov_b32 v5, v{SQ}
    v_permlane32_swap_b32 v{SUM}, v4
    v_permlane32_swap_b32 v{SQ}, v5
    v_add_f32 v4, v{SUM}, v4
    v_add_f32 v5, v{SQ}, v5
    v_mul_f32 v4, {fbits(1/640)}, v4
    v_mul_f32 v5, {fbits(1/640)}, v5
    v_fma_f32 v5, -v4, v4, v5
    v_max_f32 v5, 0, v5
    v_cvt_pk_bf16_f32 v6, v4, v5
    v_and_b32 v5, 0xffff0000, v6
    v_lshlrev_b32 v4, 16, v6
    v_add_f32 v5, {fbits(1e-5)}, v5
    v_cvt_pk_bf16_f32 v5, v5, v5
    v_and_b32 v5, 0xffff0000, v5
    v_sqrt_f32 v5, v5
    v_sub_f32 v{MM}, 0, v4
    v_cvt_pk_bf16_f32 v5, v5, v5
    v_and_b32 v5, 0xffff0000, v5
    v_rcp_f32 v6, v5
    v_mul_f32 v{MM+1}, v5, v5
    v_mul_f32 v{KK}, {fbits(C1)}, v6
    v_mul_f32 v7, v6, v6
    v_mul_f32 v6, {fbits(C2)}, v6
    v_mul_f32 v{KK+1}, v6, v7
    s_lshl_b32 s36, s32, 16
    s_lshl_b32 s37, s31, 10
    s_add_u32 s36, s36, s37
    s_add_u32 s36, s36, {WS_G}
    """)
    T = 56
    for u in range(7):
        D = ACC + 16 * u; cs = CSR + 16 * (u & 1); O = 8 if u & 1 else 4
        if u < 6: RC(u + 1); a("s_waitcnt lgkmcnt(4)")
        else: a("s_waitcnt lgkmcnt(0)")
        P = range(4)
        for p in range(8): a(f"v_pk_fma_f32 {vr(D+2*p,2)}, {vr(cs+2*p,2)}, {vr(MM,2)}, {vr(D+2*p,2)} op_sel_hi:[1,0,1]")
        for p in P: a(f"v_pk_mul_f32 {vr(T+2*p,2)}, {vr(D+2*p,2)}, {vr(D+2*p,2)}")
        for p in P: a(f"v_pk_fma_f32 {vr(T+2*p,2)}, {vr(T+2*p,2)}, {vr(KK,2)}, {vr(KK,2)} op_sel:[0,1,0] op_sel_hi:[1,1,0]")
        for p in P: a(f"v_pk_mul_f32 {vr(T+2*p,2)}, {vr(T+2*p,2)}, {vr(D+2*p,2)}")
        for i in range(8): a(f"v_exp_f32 v{T+i}, v{T+i}")
        for p in P: a(f"v_pk_mul_f32 {vr(D+2*p,2)}, {vr(D+2*p,2)}, {vr(D+8+2*p,2)}")
        for p in P: a(f"v_pk_fma_f32 {vr(T+2*p,2)}, {vr(T+2*p,2)}, {vr(MM,2)}, {vr(MM,2)} op_sel:[0,1,1] op_sel_hi:[1,1,1]")
        for i in range(8): a(f"v_rcp_f32 v{T+i}, v{T+i}")
        for p in P: a(f"v_pk_mul_f32 {vr(D+2*p,2)}, {vr(D+2*p,2)}, {vr(T+2*p,2)}")
        for p in P: a(f"v_cvt_pk_bf16_f32 v{O+p}, v{D+2*p}, v{D+2*p+1}")
        a(f"buffer_store_dwordx4 {vr(O,4)}, v3, s[12:15], s36 offen")
        if u < 6: a("s_add_u32 s36, s36, 65536")
    stamp(a, 3)
    stamp_dump(a, 2, 4)
    a(f"{L}_end:\ns_endpgm")
    return dict(label=L, grid=256, block=256, lds=CS0 + 1024, vgpr=176, agpr=0)
```

```python
from asmx import *
from layout import *

R_ = 5
RING = R_ * 5120
HR = 4 * RING
def emit_D(a, L):
    kernel_head(a, L)
    a(f"""
    s_cmp_ge_u32 s2, 256
    s_cbranch_scc1 {L}_end
    s_load_dwordx4 s[4:7], s[0:1], 96
    s_load_dwordx2 s[28:29], s[0:1], 120
    v_lshrrev_b32 v1, 6, v0
    v_and_b32 v2, 63, v0
    s_and_b32 s3, s2, 7
    s_lshr_b32 s33, s2, 3
    v_readfirstlane_b32 s30, v1
    s_and_b32 s31, s3, 1
    s_lshl_b32 s31, s31, 4
    s_and_b32 s34, s3, 2
    s_lshl_b32 s34, s34, 2
    s_add_u32 s31, s31, s34
    s_and_b32 s34, s33, 7
    s_add_u32 s31, s31, s34          ; tt
    s_and_b32 s32, s3, 4
    s_lshr_b32 s34, s33, 3
    s_add_u32 s32, s32, s34          ; dt
    s_mul_i32 s36, s32, 160
    """)
    VO = 8
    WO = [0, 1024, 2048, 0, 1024]
    for n in range(5):
        a(f"""
        v_add_u32 v4, {64*n}, v2
        v_mul_u32_u24 v5, 6554, v4
        v_lshrrev_b32 v5, 16, v5
        v_mul_u32_u24 v6, 10, v5
        v_sub_u32 v6, v4, v6
        v_mul_u32_u24 v5, 1280, v5
        v_lshl_add_u32 v5, v6, 4, v5
        s_sub_u32 s37, s36, {WO[n]}
        v_add_u32 v{VO+n}, s37, v5
        """)
    VH = 13
    sOW, sOH, sMW = 40, 41, 42
    a(f"""
    v_lshrrev_b32 v4, 5, v2
    v_lshlrev_b32 v4, 16, v4
    v_bfe_u32 v5, v2, 4, 1
    v_lshl_add_u32 v4, v5, 9, v4
    v_and_b32 v5, 15, v2
    v_lshl_add_u32 v4, v5, 4, v4
    s_lshr_b32 s36, s30, 1
    s_lshl_b32 s36, s36, 10
    s_and_b32 s37, s30, 1
    s_lshl_b32 s37, s37, 8
    s_or_b32 s36, s36, s37
    v_or_b32 v{VH}, s36, v4
    v_xor_b32 v{VH+1}, 256, v{VH}
    v_xor_b32 v{VH+2}, 1024, v{VH}
    v_xor_b32 v{VH+3}, 1280, v{VH}
    s_mul_i32 s{sOW}, s30, 40960
    s_lshl_b32 s{sOH}, s30, 17
    s_lshl_b32 s36, s31, 11
    s_add_u32 s{sOH}, s{sOH}, s36
    s_mul_i32 s{sMW}, s30, {RING}
    v_lshlrev_b32 v3, 4, v2
    s_lshl_b32 s36, s31, 1
    s_lshr_b32 s37, s30, 1
    s_add_u32 s36, s36, s37
    s_mul_i32 s36, s36, 40960
    s_mul_i32 s37, s32, 5120
    s_add_u32 s36, s36, s37
    s_add_u32 s43, s36, {WS_H}
    s_mul_i32 s44, s30, 5120
    s_add_u32 s44, s44, {HR}
    s_waitcnt lgkmcnt(0)
    s_add_u32 s16, s28, {WS_G}
    s_addc_u32 s17, s29, 0
    s_mov_b32 s18, {108*65536}
    s_mov_b32 s19, 0x00020000
    """)
    stamp(a, 0)
    srd(a, 8, 4, 1728 * 1280); srd(a, 12, 28, WS_SIZE); srd(a, 20, 6, 2048 * 1280)
    ACC = 176
    FA = 24
    HB = 48
    vA = 17
    NK = 14
    seq = []
    def loads(x):
        sl = x % R_
        t = []
        def w(n):
            def f():
                a(f"buffer_load_dwordx4 v{VO+n}, s[8:11], s{sOW} offen offset:{WO[n]} lds"); seq.append(("w", x, n))
            return f
        def h(q):
            def f():
                a(f"buffer_load_dwordx4 {vr(HB+16*sl+4*q,4)}, v{VH+q}, s[16:19], s{sOH} offen"); seq.append(("h", x, q))
            return f
        t.append(lambda: a(f"s_add_u32 m0, s{sMW}, {sl*5120}"))
        t.append(h(0))
        t += [w(0), w(1), w(2)]
        t.append(lambda: a(f"s_add_u32 m0, s{sMW}, {sl*5120+3072}"))
        t.append(h(1))
        t += [w(3), w(4), h(2), h(3)]
        t.append(lambda: a(f"s_add_u32 s{sOW}, s{sOW}, {4*40960}\ns_add_u32 s{sOH}, s{sOH}, {4*131072}"))
        return t
    for x in range(R_ - 1):
        for f in loads(x): f()
        if x == 1:
            a(f"s_mov_b32 m0, s44")
            for n in range(4):
                a(f"buffer_load_dwordx4 v3, s[12:15], s43 offen offset:{1024*n} lds"); seq.append(("r", n))
            a(f"s_add_u32 m0, s44, 4096\ns_add_u32 s43, s43, 4096")
            a(f"buffer_load_dwordx4 v3, s[12:15], s43 offen lds"); seq.append(("r", 4))
    a(f"""
    v_lshrrev_b32 v4, 5, v2
    v_lshlrev_b32 v4, 4, v4
    v_bfe_u32 v5, v2, 2, 3
    v_add_u32 v4, v4, v5             ; f = 16*(g>>1) + 4*(g&1) + (s>>2)
    v_mul_u32_u24 v4, 160, v4
    v_and_b32 v5, 3, v2
    v_lshl_add_u32 v4, v5, 3, v4
    v_add_u32 v{vA}, s{sMW}, v4
    """)
    def wv(key):
        n = len(seq) - 1 - seq.index(key)
        a(f"s_waitcnt vmcnt({n})")
    def RA(x, e):
        for i in range(2): a(f"ds_read_b64_tr_b16 {vr(FA+4*e+2*i,2)}, v{vA} offset:{(x%R_)*5120 + i*8*160 + e*32}")
    wv(("w", 0, 4))
    stamp(a, 1)
    for e in range(5): RA(0, e)
    for x in range(NK):
        fill = loads(x + R_ - 1) if x + R_ - 1 < NK else []
        fill = list(fill)
        wv(("h", x, 3))
        for e in range(5):
            last = x == NK - 1
            a(f"s_waitcnt lgkmcnt({8 if not last else 8 - 2*e})")
            for q in range(4):
                d = ACC + 16 * e + 4 * q
                a(f"v_mfma_f32_16x16x32_bf16 {vr(d,4)}, {vr(FA+4*e,4)}, {vr(HB+16*(x%R_)+4*q,4)}, {vr(d,4) if x else 0}")
                if fill and q < 3: fill.pop(0)()
            if not last:
                if e == 0: wv(("w", x + 1, 4))
                RA(x + 1, e)
        assert not fill
    stamp(a, 2)
    a(f"""
    v_add_u32 v4, s{sMW}, v3
    s_xor_b32 s36, s30, 1
    s_mul_i32 s36, s36, {RING}
    v_add_u32 v5, s36, v3
    s_xor_b32 s36, s30, 2
    s_mul_i32 s36, s36, {RING}
    v_add_u32 v6, s36, v3
    s_xor_b32 s36, s30, 3
    s_mul_i32 s36, s36, {RING}
    v_add_u32 v7, s36, v3
    v_lshrrev_b32 v8, 2, v2
    v_lshlrev_b32 v8, 6, v8
    v_and_b32 v9, 3, v2
    v_lshl_add_u32 v8, v9, 3, v8
    s_and_b32 s36, s30, 1
    s_lshl_b32 s36, s36, 5
    s_add_u32 s36, s36, s44
    v_add_u32 v8, s36, v8
    """)
    for q in (1, 2, 3):
        for e in range(5): a(f"ds_write_b128 v4, {vr(ACC+16*e+4*q,4)} offset:{(q*5+e)*1024}")
    RS = 24
    for e in range(5): a(f"ds_read_b64_tr_b16 {vr(RS+2*e,2)}, v8 offset:{e*1024}")
    a(f"""
    v_and_b32 v9, 15, v2
    v_mul_u32_u24 v9, 1280, v9
    v_lshrrev_b32 v10, 4, v2
    v_lshl_add_u32 v9, v10, 3, v9
    s_lshl_b32 s36, s31, 2
    s_add_u32 s36, s36, s30
    s_mul_i32 s36, s36, {16*1280}
    s_mul_i32 s37, s32, 160
    s_add_u32 s36, s36, s37
    s_waitcnt lgkmcnt(0)
    s_barrier
    """)
    X = 48
    stamp(a, 3)
    for e in range(5):
        for q in (1, 2, 3): a(f"ds_read_b128 {vr(X+12*e+4*(q-1),4)}, v{4+q} offset:{(q*5+e)*1024}")
    for e in range(5):
        d = ACC + 16 * e
        for i in range(2):
            a(f"v_lshlrev_b32 v{36+2*i}, 16, v{RS+2*e+i}\nv_and_b32 v{37+2*i}, 0xffff0000, v{RS+2*e+i}")
        for i in range(2): a(f"v_pk_add_f32 {vr(d+2*i,2)}, {vr(d+2*i,2)}, {vr(36+2*i,2)}")
        a(f"s_waitcnt lgkmcnt({12-3*e})")
        for i in range(2): a(f"v_pk_add_f32 {vr(X+12*e+2*i,2)}, {vr(X+12*e+2*i,2)}, {vr(X+12*e+4+2*i,2)}")
        for i in range(2): a(f"v_pk_add_f32 {vr(d+2*i,2)}, {vr(d+2*i,2)}, {vr(X+12*e+8+2*i,2)}")
        for i in range(2): a(f"v_pk_add_f32 {vr(d+2*i,2)}, {vr(d+2*i,2)}, {vr(X+12*e+2*i,2)}")
        for i in range(2): a(f"v_cvt_pk_bf16_f32 v{d+4+i}, v{d+2*i}, v{d+2*i+1}")
        a(f"buffer_store_dwordx2 {vr(d+4,2)}, v9, s[20:23], s36 offen offset:{32*e}")
    stamp(a, 4)
    stamp_dump(a, 3, 5)
    a(f"{L}_end:\ns_endpgm")
    return dict(label=L, grid=256, block=256, lds=HR + 4 * 5120, vgpr=256, agpr=0)
```

```python
import sys; sys.path.insert(0,'gen')
from layout import *
def mk(src_path, path, kk=None, idx=None, mode="max", base=6000):
    src=open(src_path).read()
    lines=src.split('\n'); out=[]
    la=[i for i,l in enumerate(lines) if l.startswith('; @launch')]
    el="; @launch kernel=ke_kernel grid=(1,1,1) block=(1024,1,1) lds=8192"
    for i,l in enumerate(lines):
        out.append(l)
        if i==la[-1]: out.append(el)
    t='\n'.join(out)
    body=f"""
.globl ke_kernel
.p2align 8
.type ke_kernel,@function
ke_kernel:
    s_cmp_ge_u32 s2, 1
    s_cbranch_scc1 ke_end
    s_load_dwordx2 s[28:29], s[0:1], 120
    v_lshlrev_b32 v1, 6, v0
    s_waitcnt lgkmcnt(0)
    s_mov_b32 s12, s28
    s_mov_b32 s13, s29
    s_mov_b32 s14, {WS_SIZE}
    s_mov_b32 s15, 0x00020000
    s_mov_b32 s16, {WS_DBG}
    s_mov_b32 s17, {WS_DBG + (kk or 0)*65536 + (idx or 0)*4}
    buffer_load_dword v2, v1, s[12:15], s16 offen
    buffer_load_dword v3, v1, s[12:15], s17 offen
    s_memrealtime s[20:21]
    s_waitcnt vmcnt(0) lgkmcnt(0)
    v_sub_u32 v2, s20, v2
    v_sub_u32 v3, s20, v3
    s_mov_b32 s22, 20000
    v_cmp_gt_u32 vcc, s22, v2
    v_cndmask_b32 v2, 0, v2, vcc   ; invalid -> 0 ; want max age = earliest start
    v_cmp_gt_u32 vcc, s22, v3
    v_mov_b32 v5, {'0' if mode!='max' else '20000'}
    v_cndmask_b32 v3, v5, v3, vcc
    v_cndmask_b32 v6, 0, 1, vcc
    v_mov_b32 v4, 0
    v_mov_b32 v7, 20000
    ds_write_b32 v4, v4
    ds_write_b32 v4, {'v7' if mode=='max' else 'v4'} offset:4
    ds_write_b32 v4, v4 offset:8
    s_waitcnt lgkmcnt(0)
    s_barrier
    ds_max_u32 v4, v2
    {'ds_min_u32' if mode=='max' else 'ds_max_u32' if mode=='min' else 'ds_add_u32'} v4, v3 offset:4
    ds_add_u32 v4, v6 offset:8
    s_waitcnt lgkmcnt(0)
    s_barrier
    ds_read_b96 v[8:10], v4
    s_waitcnt lgkmcnt(0)
"""
    if mode=="mean":
        body+="""
    v_cvt_f32_u32 v9, v9
    v_cvt_f32_u32 v10, v10
    v_rcp_f32 v10, v10
    s_nop 1
    v_mul_f32 v9, v9, v10
    v_cvt_u32_f32 v9, v9
"""
    body+=f"""
    s_nop 1
    v_readfirstlane_b32 s23, v8
    v_readfirstlane_b32 s24, v9
    s_sub_u32 s25, s20, s23        ; T0
    s_sub_u32 s24, s23, s24
    {'s_mov_b32 s24, 0' if kk is None else ''}
    s_add_u32 s24, s24, {base}
    s_min_u32 s24, s24, 30000
ke_l:
    s_memrealtime s[20:21]
    s_waitcnt lgkmcnt(0)
    s_sub_u32 s26, s20, s25
    s_cmp_lt_u32 s26, s24
    s_cbranch_scc1 ke_l
ke_end:
    s_endpgm
.section .rodata,"a"
.p2align 6
.amdhsa_kernel ke_kernel
  .amdhsa_next_free_vgpr 32
  .amdhsa_next_free_sgpr 102
  .amdhsa_accum_offset 32
  .amdhsa_group_segment_fixed_size 0
  .amdhsa_kernarg_size 128
  .amdhsa_user_sgpr_count 2
  .amdhsa_user_sgpr_kernarg_segment_ptr 1
  .amdhsa_system_sgpr_workgroup_id_x 1
.end_amdhsa_kernel
"""
    t=t.replace('.section .rodata,"a"', body, 1)
    open(path,'w').write(t)
    import build; build.check(path)
if __name__=="__main__":
    src=sys.argv[1]
    for spec in sys.argv[2:]:
        p=spec.split(',')
        if p[0]=='n': mk(src, f'sp_n.s')
        else: mk(src, f'sp_{p[0]}_{p[1]}_{p[2]}.s', int(p[0]), int(p[1]), p[2])
```

```python
import re, sys
NAME = "sequential_preLN__ssm_conv_s4__geglu_ffn__prompt"

def vr(a, n=1): return f"v{a}" if n == 1 else f"v[{a}:{a+n-1}]"
def ar(a, n=1): return f"a{a}" if n == 1 else f"a[{a}:{a+n-1}]"
def sr(a, n=1): return f"s{a}" if n == 1 else f"s[{a}:{a+n-1}]"
def R(a, n=1):
    if a < 256:
        assert a + n <= 256, (a, n)
        return vr(a, n)
    assert a + n <= 512
    return ar(a - 256, n)

_reg = re.compile(r"^(-|\|)?([vas])(\d+|\[(\d+):(\d+)\])\|?$")
def parse_regs(op):
    op = op.strip()
    if op in ("vcc",): return [("s", "vcc")]
    if op in ("vcc_lo", "vcc_hi"): return [("s", "vcc")]
    if op in ("exec", "exec_lo", "exec_hi"): return [("s", "exec")]
    if op == "m0": return [("s", "m0")]
    if op == "scc": return []
    m = _reg.match(op)
    if not m: return []
    k = m.group(2)
    if m.group(4) is not None: lo, hi = int(m.group(4)), int(m.group(5))
    else: lo = hi = int(m.group(3))
    return [(k, i) for i in range(lo, hi + 1)]

TRANS = ("v_exp_f32", "v_log_f32", "v_rcp_f32", "v_rsq_f32", "v_sqrt_f32", "v_sin_f32", "v_cos_f32", "v_rcp_iflag_f32")
class Ins:
    __slots__ = ("text", "op", "kind", "w", "r", "passes", "srcc", "dpp", "trans", "nop", "target", "label", "store_data", "lds_dma", "m0use", "ab", "sdwa_dst", "addr")
    def __init__(s, text):
        s.text = text
        s.label = None; s.target = None; s.kind = None; s.w = set(); s.r = set(); s.passes = 0; s.srcc = set(); s.ab = set()
        s.dpp = False; s.trans = False; s.nop = 0; s.store_data = set(); s.lds_dma = False; s.m0use = False; s.sdwa_dst = False; s.addr = set()
        t = text.split(";")[0].strip()
        if t.endswith(":"):
            s.kind = "label"; s.label = t[:-1]; s.op = ""; return
        if t.startswith(".") or t == "":
            s.kind = "dir"; s.op = ""; return
        parts = t.split(None, 1)
        op = parts[0]; s.op = op
        rest = parts[1] if len(parts) > 1 else ""
        ops = []; depth = 0; cur = ""
        for ch in rest:
            if ch in "[(": depth += 1
            if ch in "])": depth -= 1
            if ch == "," and depth == 0: ops.append(cur); cur = ""
            else: cur += ch
        ops.append(cur)
        ops = [o.strip() for o in ops]
        mods = ""
        if ops:
            l = ops[-1].split(None, 1)
            if len(l) > 1: ops[-1] = l[0]; mods = l[1]
        P = [parse_regs(o) for o in ops]
        allr = lambda lst: set(x for p in lst for x in p)
        if op == "s_nop":
            s.kind = "nop"; s.nop = int(ops[0], 0) + 1
        elif op.startswith("s_cbranch") or op == "s_branch":
            s.kind = "branch"; s.target = ops[0]
            if "vcc" in op: s.r = {("s", "vcc")}
            if "exec" in op: s.r = {("s", "exec")}
        elif op == "s_endpgm": s.kind = "end"
        elif op in ("s_waitcnt", "s_barrier", "s_setprio", "s_sleep"): s.kind = "ctl"
        elif op.startswith("s_load") or op.startswith("s_buffer_load") or op in ("s_memtime", "s_memrealtime"):
            s.kind = "smem"; s.w = allr(P[:1]); s.r = allr(P[1:])
        elif op.startswith("s_"):
            s.kind = "salu"
            if op.startswith("s_cmp") or op.startswith("s_bitcmp"): s.r = allr(P)
            else:
                s.w = allr(P[:1]); s.r = allr(P[1:])
                if "saveexec" in op: s.w |= {("s", "exec")}; s.r |= {("s", "exec")}
                if op in ("s_addk_i32", "s_mulk_i32", "s_cmov_b32", "s_cmov_b64"): s.r |= s.w
        elif op.startswith("v_mfma"):
            s.kind = "mfma"; s.w = allr(P[:1]); s.ab = allr(P[1:3]); s.srcc = allr(P[3:4]); s.r = s.ab | s.srcc
            s.passes = 8 if "32x32x16" in op or "32x32x8" in op else 4 if "16x16x32" in op or "16x16x16" in op else 2 if "4x4x4" in op else None
            assert s.passes, op
        elif op.startswith("v_"):
            s.kind = "dot" if op.startswith("v_dot") else "valu"
            s.dpp = "_dpp" in op or "quad_perm" in mods or "row_" in mods or "wave_" in mods
            s.trans = op.replace("_e32", "").replace("_e64", "") in TRANS
            if op.startswith("v_cmpx"):
                s.w = {("s", "exec")}; s.r = allr(P)
            elif op.startswith("v_permlane") or op.startswith("v_swap"):
                s.w = allr(P[:2]); s.r = allr(P[:2])
            elif "_co_" in op and not op.startswith("v_cmp"):
                s.w = allr(P[:2]); s.r = allr(P[2:])
            else:
                s.w = allr(P[:1]); s.r = allr(P[1:])
                if op.startswith(("v_fmac", "v_mac", "v_dot2c", "v_pk_fmac", "v_writelane")) or s.dpp or "sdwa" in op: s.r |= set(x for x in s.w if x[0] != "s")
                if op.startswith("v_cndmask") and len(ops) == 3: s.r |= {("s", "vcc")}
            if "sdwa" in op and "dst_sel:DWORD" not in mods: s.sdwa_dst = True
            if "op_sel" in mods and not op.startswith("v_pk_") and not op.startswith("v_dot"): s.sdwa_dst = True
        elif op.startswith("ds_"):
            s.kind = "ds"
            if "addtid" in op: s.m0use = True; s.r |= {("s", "m0")}
            if op.startswith(("ds_read", "ds_bpermute", "ds_permute", "ds_swizzle")) or "_rtn" in op:
                s.w = allr(P[:1]); s.r |= allr(P[1:])
                if "d16" in op: s.r |= s.w
            else: s.r |= allr(P)
        elif op.startswith(("buffer_", "global_")):
            s.kind = "vmem"
            islds = re.search(r"\blds\b", mods) is not None or "_lds_" in op
            if islds:
                s.lds_dma = True; s.m0use = True; s.r = allr(P) | {("s", "m0")}
            elif "_load" in op:
                s.w = allr(P[:1]); s.r = allr(P[1:])
            elif "atomic" in op:
                s.r = allr(P)
                if "sc0" in mods: s.w = allr(P[:1])
            elif op in ("buffer_wbl2", "buffer_inv"): pass
            else:
                di = 0 if op.startswith("buffer_") else 1
                s.r = allr(P)
                if "x3" in op or "x4" in op: s.store_data = set(P[di])
        else:
            raise ValueError("unknown instr: " + text)

def isv(x): return x[0] in ("v", "a")

def need(p, c):
    n = 0
    pv = p.kind in ("valu", "dot")
    cv = c.kind in ("valu", "dot")
    pwv = set(x for x in p.w if isv(x)); pws = p.w - pwv
    if pv:
        if c.kind == "vmem" and pws & c.r: n = max(n, 5)
        if cv and pws & c.r: n = max(n, 4 if c.op.startswith(("v_readlane", "v_writelane")) else 2)
        if cv and c.dpp and pwv & c.r: n = max(n, 2)
        if ("s", "exec") in pws:
            if cv and c.dpp: n = max(n, 5)
            if c.kind == "mfma" or c.op.startswith(("v_readlane", "v_readfirstlane", "v_writelane", "v_permlane")): n = max(n, 4)
        if ("s", "vcc") in pws and c.op.startswith("s_cbranch_vcc"): n = max(n, 0)
        if c.op.startswith(("v_readlane", "v_readfirstlane")) and pwv & c.r: n = max(n, 1)
        if c.op.startswith("v_permlane") and pwv & c.r: n = max(n, 2)
        if p.trans and cv and not c.trans and pwv & (c.r): n = max(n, 1)
        if p.trans and c.kind in ("ds", "vmem") and pwv & c.r: n = max(n, 1)
        if p.sdwa_dst and cv and pwv & (c.r | c.w): n = max(n, 1)
        if c.kind == "mfma" and pwv & c.r: n = max(n, 2 if p.kind == "valu" else 3)
        if p.kind == "dot" and pwv & (c.r | c.w):
            same = c.kind == "dot" and c.op == p.op
            if same:
                ops_ab = c.r - (c.w if "dot2c" in c.op else set())
                if "dot2c" in c.op: n = max(n, 3 if pwv & ops_ab else 0)
                else:
                    t = c.text.split(";")[0]; o = [x.strip() for x in t.split(None, 1)[1].split(",")]
                    ab = set(parse_regs(o[1])) | set(parse_regs(o[2]))
                    n = max(n, 3 if pwv & ab else 0)
            else: n = max(n, 3)
    if p.kind == "salu" and ("s", "m0") in p.w and c.m0use: n = max(n, 1)
    if p.kind == "vmem" and p.store_data and (c.w & p.store_data): n = max(n, 2 if (cv or c.kind == "mfma") else 1)
    if p.kind == "mfma":
        k = {2: 0, 4: 1, 8: 2}[p.passes]
        if c.kind == "mfma":
            if c.ab & p.w: n = max(n, (5, 8, 12)[k])
            if c.srcc & p.w:
                if c.srcc == p.w and c.passes == p.passes: n = max(n, (2, 0, 0)[k])
                else: n = max(n, (4, 6, 10)[k])
            elif c.w & p.w: n = max(n, (4, 6, 10)[k])
        elif c.kind in ("valu", "dot", "ds", "vmem"):
            if (c.r | c.w) & p.w: n = max(n, (5, 8, 12)[k])
            if cv and c.w & p.srcc: n = max(n, (1, 3, 7)[k])
            if c.kind in ("ds", "vmem") and c.w & p.srcc: n = max(n, (1, 3, 7)[k])
    return n

class Asm:
    def __init__(s):
        s.l = []; s.nlab = 0
    def __call__(s, txt=""):
        for x in txt.split("\n"):
            x = x.strip()
            if x == "" or x.startswith(";"): continue
            s.l.append(x)
        return s
    def label(s, base="L"):
        s.nlab += 1
        return f"{base}_{s.nlab}"
    def finish(s, verbose=True, check_waits=True):
        ins = [Ins(x) for x in s.l]
        added = 0
        def maps():
            labels = {x.label: i for i, x in enumerate(ins) if x.kind == "label"}
            preds = {}
            for i, x in enumerate(ins):
                if x.kind == "branch": preds.setdefault(labels[x.target], []).append(i)
            return preds
        while True:
            preds = maps()
            change = False
            i = 0
            while i < len(ins):
                c = ins[i]
                if c.kind in ("label", "dir", "nop", "ctl", "end"):
                    i += 1; continue
                worst = 0; why = None
                stack = [(i - 1, 0, True)]
                seen = set()
                while stack:
                    j, dist, fall = stack.pop()
                    while j >= 0 and dist < 13:
                        if (j, dist) in seen: break
                        seen.add((j, dist))
                        p = ins[j]
                        if p.kind == "label":
                            for bb in preds.get(j, []): stack.append((bb, dist, False))
                            j -= 1; fall = True; continue
                        if p.kind == "dir": j -= 1; continue
                        if fall and (p.kind == "end" or p.op == "s_branch"): break
                        fall = True
                        if p.kind == "nop": dist += p.nop; j -= 1; continue
                        n = need(p, c)
                        if n - dist > worst: worst = n - dist; why = p
                        dist += 1; j -= 1
                if worst > 0:
                    if verbose > 1: print(f"[hazard] +{worst}: {why.text}  ->  {c.text}", file=sys.stderr)
                    ins.insert(i, Ins(f"s_nop {worst-1}"))
                    added += worst; change = True
                    preds = maps()
                    i += 1
                i += 1
            if not change: break
        if verbose: print(f"[hazard] inserted {added} wait states", file=sys.stderr)
        if check_waits: check_waitcnt(ins)
        s.ins = ins
        return "\n".join((x.text if x.kind in ("label", "dir") else "    " + x.text) for x in ins) + "\n"

def check_waitcnt(ins):
    labels = {x.label: i for i, x in enumerate(ins) if x.kind == "label"}
    starts = [i for i, x in enumerate(ins) if x.kind == "label" and x.label.endswith("_kernel")]
    errs = set()
    for st in starts:
        work = [(st, (), ())]
        visits = {}
        while work:
            i, vm, lg = work.pop()
            vm = list(vm); lg = list(lg)
            while i < len(ins):
                x = ins[i]
                if x.kind == "label":
                    key = (i, tuple(vm), tuple(lg))
                    if key in visits or visits.get(i, 0) > 6: break
                    visits[key] = 1; visits[i] = visits.get(i, 0) + 1
                if x.kind == "end": break
                if x.op == "s_waitcnt":
                    m = re.search(r"vmcnt\((\d+)\)", x.text)
                    if m:
                        n = int(m.group(1)); vm = vm[len(vm) - n:] if n and len(vm) > n else (vm if n else [])
                    m = re.search(r"lgkmcnt\((\d+)\)", x.text)
                    if m:
                        n = int(m.group(1))
                        if n == 0: lg = []
                        elif not any(k == "smem" for k, _ in lg):
                            lg = lg[len(lg) - n:] if len(lg) > n else lg
                touched = x.r | x.w
                for q, nm in ((vm, "vmcnt"), (lg, "lgkmcnt")):
                    for k, regs in q:
                        if regs & touched and not (x.kind == "ds" and k == "ds" and not (regs & x.r)) and not (x.kind == "vmem" and k == "vmem" and not (regs & x.r)):
                            errs.add((i, nm, x.text))
                if x.kind == "vmem": vm.append(("vmem", frozenset(x.w)))
                if x.kind == "ds": lg.append(("ds", frozenset(x.w)))
                if x.kind == "smem": lg.append(("smem", frozenset(x.w)))
                if len(vm) > 63: errs.add((i, "vmcnt overflow", x.text))
                if x.kind == "branch":
                    work.append((labels[x.target], tuple(vm), tuple(lg)))
                    if x.op == "s_branch": break
                i += 1
    for e in sorted(errs): print("[waitcheck] possible missing wait:", e, file=sys.stderr)
    return not errs

def kernel_head(a, label):
    a(f".globl {label}\n.p2align 8\n.type {label},@function\n{label}:")

def kernel_desc(label, vgpr=256, agpr=0, sgpr=102):
    acc = (vgpr + 3) // 4 * 4
    tot = acc + agpr if agpr else vgpr
    return f""".amdhsa_kernel {label}
  .amdhsa_next_free_vgpr {tot}
  .amdhsa_next_free_sgpr {sgpr}
  .amdhsa_accum_offset {acc}
  .amdhsa_group_segment_fixed_size 0
  .amdhsa_kernarg_size 128
  .amdhsa_user_sgpr_count 2
  .amdhsa_user_sgpr_kernarg_segment_ptr 1
  .amdhsa_system_sgpr_workgroup_id_x 1
.end_amdhsa_kernel
"""

def srd(a, d, base, nbytes):
    a(f"s_mov_b32 s{d}, s{base}\ns_mov_b32 s{d+1}, s{base+1}\ns_mov_b32 s{d+2}, {nbytes}\ns_mov_b32 s{d+3}, 0x00020000")

def file_text(launches, body, descs, header=""):
    t = header
    for (label, grid, block, lds) in launches:
        t += f"; @launch kernel={label} grid=({grid},1,1) block=({block},1,1) lds={lds}\n"
    t += '.amdgcn_target "amdgcn-amd-amdhsa--gfx950"\n.text\n' + body
    t += '.section .rodata,"a"\n'
    for d in descs:
        t += ".p2align 6\n" + d
    return t

PROF = False
def stamp(a, i):
    if not PROF: return
    a(f"s_memrealtime s[{64+2*i}:{65+2*i}]\ns_waitcnt lgkmcnt(0)")
def stampc(a, i):
    if not PROF: return
    a(f"s_memtime s[{64+2*i}:{65+2*i}]\ns_waitcnt lgkmcnt(0)")
def stamp_dump(a, kidx, n, ws_srd=12, drain=True):
    if not PROF: return
    from layout import WS_DBG
    if drain: a("s_waitcnt vmcnt(0)")
    stamp(a, n)
    a("s_mov_b64 exec, -1\nv_mov_b32 v1, 0")
    for i in list(range(n + 1)) + [14, 15]: a(f"v_writelane_b32 v1, s{64+2*i}, {i}")
    a(f"""
    s_lshl_b32 s62, s2, 2
    s_add_u32 s62, s62, s30
    s_lshl_b32 s62, s62, 6
    s_add_u32 s62, s62, {WS_DBG + kidx * 65536}
    v_mbcnt_lo_u32_b32 v0, -1, 0
    v_mbcnt_hi_u32_b32 v0, -1, v0
    v_lshlrev_b32 v0, 2, v0
    s_mov_b64 exec, 0xffff
    buffer_store_dword v1, v0, s[{ws_srd}:{ws_srd+3}], s62 offen
    """)
```

```python
from asmx import *
from layout import *
from phA import fbits

WROW = 224
WMAT = 64 * WROW + 128
WB = 2 * 64 * WROW + 128
NB = 4
HR0 = NB * WB
CS0 = HR0 + 4 * 8192
WOFF = [0, 0, 1024, 0, 1024, 0, 1024]
C1 = -2.302208198; C2 = -0.1029432397

def emit_C(a, L, stats="dot2", rot="1", nodma="0", nobar="0", nolds="0", **kw):
    nodma = int(nodma); nobar = int(nobar); nolds = int(nolds); inloop = [False]
    rot = int(rot)
    kernel_head(a, L)
    a(f"""
    s_cmp_ge_u32 s2, 256
    s_cbranch_scc1 {L}_end
    s_load_dwordx4 s[4:7], s[0:1], 80
    s_load_dwordx2 s[28:29], s[0:1], 120
    v_lshrrev_b32 v1, 6, v0
    v_and_b32 v2, 63, v0
    s_and_b32 s3, s2, 7
    s_lshr_b32 s33, s2, 3
    v_readfirstlane_b32 s30, v1
    s_and_b32 s31, s3, 1
    s_lshl_b32 s31, s31, 3
    s_and_b32 s34, s33, 7
    s_add_u32 s31, s31, s34          ; rb
    s_lshr_b32 s32, s3, 1
    s_lshl_b32 s32, s32, 2
    s_lshr_b32 s34, s33, 3
    s_add_u32 s32, s32, s34          ; fs
    s_mul_i32 s32, s32, 27
    s_lshr_b32 s32, s32, 2           ; u0
    s_lshl_b32 s31, s31, 2
    s_add_u32 s31, s31, s30          ; tb32
    v_lshlrev_b32 v3, 4, v2          ; lane*16
    s_and_b32 s35, s30, 1
    s_mul_i32 s36, s35, {32*3456}
    s_lshl_b32 s37, s32, 5
    s_add_u32 s36, s36, s37
    """)
    VO = 8
    for n in range(7):
        a(f"""
        v_add_u32 v4, {64*n}, v2
        v_mul_u32_u24 v5, 4682, v4
        v_lshrrev_b32 v5, 16, v5
        v_mul_u32_u24 v6, 14, v5
        v_sub_u32 v6, v4, v6
        v_mul_u32_u24 v5, 3456, v5
        v_lshl_add_u32 v5, v6, 4, v5
        s_sub_u32 s37, s36, {WOFF[n]}
        v_add_u32 v{VO+n}, s37, v5
        """)
    a(f"""
    v_cmp_le_u32 vcc, 28, v2
    v_add_u32 v4, {6912 - 28*16}, v3
    s_lshl_b32 s38, s32, 6
    s_add_u32 s38, s38, {WS_CS}
    v_cndmask_b32 v4, v3, v4, vcc
    s_mul_i32 s37, s31, 40960
    s_add_u32 s37, s37, {WS_H}
    s_waitcnt lgkmcnt(0)
    s_cmp_ge_u32 s30, 2
    s_cselect_b32 s8, s6, s4
    s_cselect_b32 s9, s7, s5
    s_cselect_b32 s39, {WMAT}, 0
    s_mov_b32 s10, {640*3456}
    s_mov_b32 s11, 0x00020000
    s_add_u32 s16, s28, s37
    s_addc_u32 s17, s29, 0
    s_mov_b32 s18, 40960
    s_mov_b32 s19, 0x00020000
    """)
    stamp(a, 0)
    srd(a, 12, 28, WS_SIZE)
    sMW, sMH, sOW, sOH, sRW, sIT, sMW0 = 40, 41, 42, 43, 44, 45, 46
    sEW, sEH = 49, 50
    a(f"""
    s_mul_i32 s35, s35, {32*WROW}
    s_add_u32 s{sMW0}, s39, s35
    s_mov_b32 s{sMW}, s{sMW0}
    s_lshl_b32 s{sMH}, s30, 13
    s_add_u32 s{sMH}, s{sMH}, {HR0}
    s_mov_b32 m0, {CS0}
    s_and_b32 s34, s33, 7
    s_mul_i32 s34, s34, {10*rot}
    s_lshr_b32 s34, s34, 3
    s_lshr_b32 s48, s33, 3
    s_mul_i32 s48, s48, {5*rot}
    s_lshr_b32 s48, s48, 1
    s_add_u32 s34, s34, s48
    s_cmp_ge_u32 s34, 10
    s_cselect_b32 s48, 10, 0
    s_sub_u32 s34, s34, s48
    s_mul_i32 s{sOW}, s34, {64*3456}
    s_lshl_b32 s{sOH}, s34, 12
    s_mov_b32 s{sEW}, s{sOW}
    s_mov_b32 s{sEH}, s{sOH}
    """)
    def stepW():
        a(f"s_add_u32 s{sOW}, s{sOW}, {64*3456}\ns_cmp_eq_u32 s{sOW}, {640*3456}\ns_cselect_b32 s{sOW}, 0, s{sOW}\ns_cmp_eq_u32 s{sOW}, s{sEW}\ns_cselect_b32 s{sOW}, 0x1000000, s{sOW}")
    def stepH():
        a(f"s_add_u32 s{sOH}, s{sOH}, 4096\ns_cmp_eq_u32 s{sOH}, 40960\ns_cselect_b32 s{sOH}, 0, s{sOH}\ns_cmp_eq_u32 s{sOH}, s{sEH}\ns_cselect_b32 s{sOH}, 0x1000000, s{sOH}")
    seq = []
    a("buffer_load_dwordx4 v4, s[12:15], s38 offen lds")
    def mH(): a(f"s_mov_b32 m0, s{sMH}")
    def mW(n): a(f"s_add_u32 m0, s{sMW}, {1024*n}")
    def dmaH(j, m=True):
        if m: mH()
        if nodma & 1 and inloop[0]: return
        a(f"buffer_load_dwordx4 v3, s[16:19], s{sOH} offen offset:{1024*j} lds")
    def dmaW(ns, m=True):
        for n in ns:
            if m and WOFF[n] == 0: mW(n)
            if nodma & 2 and inloop[0]: continue
            a(f"buffer_load_dwordx4 v{VO+n}, s[8:11], s{sOW} offen offset:{WOFF[n]} lds")
    def advW():
        a(f"s_add_u32 s{sMW}, s{sMW}, {WB}"); stepW()
    dmaH(0); seq.append(("h", 0))
    dmaW(range(7)); seq += [("w", 0, n) for n in range(7)]
    for j in (1, 2, 3): dmaH(j, j == 1); seq.append(("h", j))
    advW(); dmaW(range(7)); seq += [("w", 1, n) for n in range(7)]
    a(f"s_xor_b32 s{sMH}, s{sMH}, 4096"); stepH()
    for j in range(4): dmaH(j, j == 0); seq.append(("h", 4 + j))
    advW(); dmaW(range(7)); seq += [("w", 2, n) for n in range(7)]
    advW(); dmaW([0]); seq.append(("w", 3, 0))
    a(f"s_xor_b32 s{sMH}, s{sMH}, 4096"); stepH()
    n0 = len(seq) - 1 - seq.index(("w", 0, 6))
    sim = list(seq); NH = [99] * 4; NW = 99
    for c in range(10):
        for j in range(4):
            ks = 4 * c + j
            NH[j] = min(NH[j], len(sim) - 1 - sim.index(("h", ks + 1)))
            sim.append(("h", ks + 8))
            if j == 3:
                NW = min(NW, len(sim) - 1 - sim.index(("w", c + 1, 6)))
                sim.append(("w", c + 4, 0))
            else: sim += [("w", c + 3, 1 + 2 * j), ("w", c + 3, 2 + 2 * j)]
    vW0, vW, vH = 15, 16, 17
    SUM, SQ = 18, 19
    FB = 20
    FA = 28
    ACC = 64
    ST = 56
    a(f"""
    v_lshrrev_b32 v4, 4, v2                ; G
    v_and_b32 v5, 1, v4
    v_lshrrev_b32 v4, 1, v4
    v_bfe_u32 v6, v2, 2, 2
    v_lshl_add_u32 v6, v4, 3, v6           ; k = 8*(G>>1) + (s>>2)
    v_and_b32 v7, 3, v2
    v_lshlrev_b32 v7, 3, v7
    v_mul_u32_u24 v{vW0}, {WROW}, v6
    v_mul_u32_u24 v4, {WMAT}, v5
    v_add3_u32 v{vW0}, v{vW0}, v4, v7
    v_mov_b32 v{vW}, v{vW0}
    v_lshl_add_u32 v{vH}, v6, 6, v7
    v_lshl_add_u32 v{vH}, v5, 5, v{vH}
    v_add_u32 v{vH}, s{sMH}, v{vH}
    s_mov_b32 s{sRW}, 0
    s_mov_b32 s{sIT}, 10
    s_mov_b32 s47, 0x3f803f80
    v_mov_b32 v{SUM}, 0
    v_mov_b32 v{SQ}, 0
    """)
    for i in range(112): a(f"v_mov_b32 v{ACC+i}, 0")
    if stats == "mfma4":
        for i in range(8): a(f"v_mov_b32 v{ST+i}, 0")
        a(f"v_mov_b32 v4, s47\nv_mov_b32 v5, s47")
    def RA(j, u):
        if nolds and inloop[0]: return
        for i in range(2): a(f"ds_read_b64_tr_b16 {vr(FA+4*u+2*i,2)}, v{vW} offset:{j*16*WROW + i*4*WROW + u*32}")
    def RB(slot, par):
        for i in range(2): a(f"ds_read_b64_tr_b16 {vr(FB+4*par+2*i,2)}, v{vH} offset:{slot*1024 + i*256}")
    a(f"s_waitcnt vmcnt({n0})\ns_barrier")
    stamp(a, 1); stampc(a, 14)
    RA(0, 0); RB(0, 0)
    for u in range(1, 7): RA(0, u)
    a(f"{L}_loop:"); inloop[0] = True
    for j in range(4):
        par = j & 1
        B = FB + 4 * par
        def M(u): a(f"v_mfma_f32_32x32x16_bf16 {vr(ACC+16*u,16)}, {vr(FA+4*u,4)}, {vr(B,4)}, {vr(ACC+16*u,16)}")
        def S(q):
            if stats == "dot2":
                a(f"v_dot2_f32_bf16 v{SUM}, v{B+q}, s47, v{SUM}")
                a(f"v_dot2_f32_bf16 v{SQ}, v{B+q}, v{B+q}, v{SQ}")
            elif stats == "mfma4":
                if q < 2: a(f"v_mfma_f32_4x4x4_16b_bf16 {vr(ST,4)}, {vr(B+2*q,2)}, {vr(B+2*q,2)}, {vr(ST,4)}")
                else: a(f"v_mfma_f32_4x4x4_16b_bf16 {vr(ST+4,4)}, v[4:5], {vr(B+2*(q-2),2)}, {vr(ST+4,4)}")
        a("s_waitcnt lgkmcnt(6)")
        M(0)
        if j < 3:
            RA(j + 1, 0)
            a(f"s_waitcnt vmcnt({NH[j]})"); RB(j + 1, par ^ 1)
            M(1); mH(); RA(j + 1, 1); dmaH(j, False)
            M(2); RA(j + 1, 2); S(0)
            M(3); RA(j + 1, 3); S(1)
            a("s_waitcnt lgkmcnt(10)")
            M(4); mW(1 + 2 * j); RA(j + 1, 4); dmaW([1 + 2 * j, 2 + 2 * j], False)
            M(5); RA(j + 1, 5); S(2)
            M(6); RA(j + 1, 6); S(3)
        else:
            a(f"v_xor_b32 v{vH}, 4096, v{vH}")
            a(f"s_add_u32 s{sRW}, s{sRW}, {WB}\ns_cmp_eq_u32 s{sRW}, {NB*WB}\ns_cselect_b32 s{sRW}, 0, s{sRW}")
            a(f"s_waitcnt vmcnt({NH[j]})"); RB(0, par ^ 1)
            M(1); mH(); a(f"v_add_u32 v{vW}, s{sRW}, v{vW0}"); dmaH(j, False); S(0)
            M(2); S(1)
            a(f"s_waitcnt vmcnt({NW}) lgkmcnt(2)")
            if not nobar: a("s_barrier")
            RA(0, 0); RA(0, 1)
            M(3); RA(0, 2); RA(0, 3)
            M(4); RA(0, 4)
            a(f"s_add_u32 s{sMW}, s{sMW}, {WB}"); stepW()
            a(f"s_cmp_ge_u32 s{sMW}, {NB*WB}\ns_cselect_b32 s{sMW}, s{sMW0}, s{sMW}")
            M(5); mW(0); RA(0, 5); dmaW([0], False); S(2)
            a(f"s_xor_b32 s{sMH}, s{sMH}, 4096"); stepH()
            M(6); RA(0, 6); S(3)
    a(f"""
    s_sub_u32 s{sIT}, s{sIT}, 1
    s_cmp_lg_u32 s{sIT}, 0
    s_cbranch_scc1 {L}_loop
    """)
    stamp(a, 2); stampc(a, 15)
    vC = 15
    CSR = 24
    a(f"""
    v_lshrrev_b32 v4, 5, v2
    v_lshlrev_b32 v{vC}, 4, v4
    v_add_u32 v{vC}, {CS0}, v{vC}
    s_waitcnt lgkmcnt(0)
    """)
    def RC(u):
        b = CSR + 16 * (u & 1)
        for m in range(2):
            for j in range(2): a(f"ds_read_b128 {vr(b+8*m+4*j,4)}, v{vC} offset:{448*m + 64*u + 32*j}")
    RC(0)
    if stats == "mfma4":
        a(f"""
        v_and_b32 v4, 3, v2
        v_cmp_eq_u32 vcc, 1, v4
        v_cndmask_b32 v{SQ}, v{ST}, v{ST+1}, vcc
        v_cmp_eq_u32 vcc, 2, v4
        v_cndmask_b32 v{SQ}, v{SQ}, v{ST+2}, vcc
        v_cmp_eq_u32 vcc, 3, v4
        v_cndmask_b32 v{SQ}, v{SQ}, v{ST+3}, vcc
        v_mov_b32 v{SUM}, v{ST+4}
        """)
    KK, MM = 20, 22
    a(f"""
    v_mov_b32 v4, v{SUM}
    v_mov_b32 v5, v{SQ}
    v_permlane32_swap_b32 v{SUM}, v4
    v_permlane32_swap_b32 v{SQ}, v5
    v_add_f32 v4, v{SUM}, v4
    v_add_f32 v5, v{SQ}, v5
    v_mul_f32 v4, {fbits(1/640)}, v4
    v_mul_f32 v5, {fbits(1/640)}, v5
    v_fma_f32 v5, -v4, v4, v5
    v_max_f32 v5, 0, v5
    v_cvt_pk_bf16_f32 v6, v4, v5
    v_and_b32 v5, 0xffff0000, v6
    v_lshlrev_b32 v4, 16, v6
    v_add_f32 v5, {fbits(1e-5)}, v5
    v_cvt_pk_bf16_f32 v5, v5, v5
    v_and_b32 v5, 0xffff0000, v5
    v_sqrt_f32 v5, v5
    v_sub_f32 v{MM}, 0, v4
    v_cvt_pk_bf16_f32 v5, v5, v5
    v_and_b32 v5, 0xffff0000, v5
    v_rcp_f32 v6, v5
    v_mul_f32 v{MM+1}, v5, v5
    v_mul_f32 v{KK}, {fbits(C1)}, v6
    v_mul_f32 v7, v6, v6
    v_mul_f32 v6, {fbits(C2)}, v6
    v_mul_f32 v{KK+1}, v6, v7
    s_lshl_b32 s36, s32, 16
    s_lshl_b32 s37, s31, 10
    s_add_u32 s36, s36, s37
    s_add_u32 s36, s36, {WS_G}
    """)
    T = 56
    for u in range(7):
        D = ACC + 16 * u; cs = CSR + 16 * (u & 1); O = 8 if u & 1 else 4
        if u < 6: RC(u + 1); a("s_waitcnt lgkmcnt(4)")
        else: a("s_waitcnt lgkmcnt(0)")
        P = range(4)
        for p in range(8): a(f"v_pk_fma_f32 {vr(D+2*p,2)}, {vr(cs+2*p,2)}, {vr(MM,2)}, {vr(D+2*p,2)} op_sel_hi:[1,0,1]")
        for p in P: a(f"v_pk_mul_f32 {vr(T+2*p,2)}, {vr(D+2*p,2)}, {vr(D+2*p,2)}")
        for p in P: a(f"v_pk_fma_f32 {vr(T+2*p,2)}, {vr(T+2*p,2)}, {vr(KK,2)}, {vr(KK,2)} op_sel:[0,1,0] op_sel_hi:[1,1,0]")
        for p in P: a(f"v_pk_mul_f32 {vr(T+2*p,2)}, {vr(T+2*p,2)}, {vr(D+2*p,2)}")
        for i in range(8): a(f"v_exp_f32 v{T+i}, v{T+i}")
        for p in P: a(f"v_pk_mul_f32 {vr(D+2*p,2)}, {vr(D+2*p,2)}, {vr(D+8+2*p,2)}")
        for p in P: a(f"v_pk_fma_f32 {vr(T+2*p,2)}, {vr(T+2*p,2)}, {vr(MM,2)}, {vr(MM,2)} op_sel:[0,1,1] op_sel_hi:[1,1,1]")
        for i in range(8): a(f"v_rcp_f32 v{T+i}, v{T+i}")
        for p in P: a(f"v_pk_mul_f32 {vr(D+2*p,2)}, {vr(D+2*p,2)}, {vr(T+2*p,2)}")
        for p in P: a(f"v_cvt_pk_bf16_f32 v{O+p}, v{D+2*p}, v{D+2*p+1}")
        a(f"buffer_store_dwordx4 {vr(O,4)}, v3, s[12:15], s36 offen")
        if u < 6: a("s_add_u32 s36, s36, 65536")
    stamp(a, 3)
    stamp_dump(a, 2, 4)
    a(f"{L}_end:\ns_endpgm")
    return dict(label=L, grid=256, block=256, lds=CS0 + 1024, vgpr=176, agpr=0)
```

```python
from asmx import *
from layout import *

R_ = 5
RING = R_ * 5120
HR = 4 * RING
def emit_D(a, L, rotd="1", **kw):
    rot = int(rotd)
    kernel_head(a, L)
    a(f"""
    s_cmp_ge_u32 s2, 256
    s_cbranch_scc1 {L}_end
    s_load_dwordx4 s[4:7], s[0:1], 96
    s_load_dwordx2 s[28:29], s[0:1], 120
    v_lshrrev_b32 v1, 6, v0
    v_and_b32 v2, 63, v0
    s_and_b32 s3, s2, 7
    s_lshr_b32 s33, s2, 3
    v_readfirstlane_b32 s30, v1
    s_and_b32 s31, s3, 1
    s_lshl_b32 s31, s31, 4
    s_and_b32 s34, s3, 2
    s_lshl_b32 s34, s34, 2
    s_add_u32 s31, s31, s34
    s_and_b32 s34, s33, 7
    s_add_u32 s31, s31, s34          ; tt
    s_and_b32 s32, s3, 4
    s_lshr_b32 s34, s33, 3
    s_add_u32 s32, s32, s34          ; dt
    s_mul_i32 s36, s32, 160
    """)
    VO = 8
    WO = [0, 1024, 2048, 0, 1024]
    for n in range(5):
        a(f"""
        v_add_u32 v4, {64*n}, v2
        v_mul_u32_u24 v5, 6554, v4
        v_lshrrev_b32 v5, 16, v5
        v_mul_u32_u24 v6, 10, v5
        v_sub_u32 v6, v4, v6
        v_mul_u32_u24 v5, 1280, v5
        v_lshl_add_u32 v5, v6, 4, v5
        s_sub_u32 s37, s36, {WO[n]}
        v_add_u32 v{VO+n}, s37, v5
        """)
    VH = 13
    sOW, sOH, sMW = 40, 41, 42
    a(f"""
    v_lshrrev_b32 v4, 5, v2
    v_lshlrev_b32 v4, 16, v4
    v_bfe_u32 v5, v2, 4, 1
    v_lshl_add_u32 v4, v5, 9, v4
    v_and_b32 v5, 15, v2
    v_lshl_add_u32 v4, v5, 4, v4
    s_lshr_b32 s36, s30, 1
    s_lshl_b32 s36, s36, 10
    s_and_b32 s37, s30, 1
    s_lshl_b32 s37, s37, 8
    s_or_b32 s36, s36, s37
    v_or_b32 v{VH}, s36, v4
    v_xor_b32 v{VH+1}, 256, v{VH}
    v_xor_b32 v{VH+2}, 1024, v{VH}
    v_xor_b32 v{VH+3}, 1280, v{VH}
    s_mul_i32 s{sOW}, s30, 40960
    s_lshl_b32 s{sOH}, s30, 17
    s_lshl_b32 s36, s31, 11
    s_add_u32 s{sOH}, s{sOH}, s36
    s_mul_i32 s{sMW}, s30, {RING}
    s_and_b32 s34, s33, 7
    s_mul_i32 s34, s34, {14*rot}
    s_lshr_b32 s34, s34, 3
    s_lshr_b32 s48, s33, 3
    s_mul_i32 s48, s48, {7*rot}
    s_lshr_b32 s48, s48, 1
    s_add_u32 s34, s34, s48
    s_cmp_ge_u32 s34, 14
    s_cselect_b32 s48, 14, 0
    s_sub_u32 s34, s34, s48
    s_mov_b32 s49, s{sOW}
    s_mov_b32 s50, s{sOH}
    s_add_u32 s51, s49, {14*4*40960}
    s_mul_i32 s48, s34, {4*40960}
    s_add_u32 s{sOW}, s{sOW}, s48
    s_mul_i32 s48, s34, {4*131072}
    s_add_u32 s{sOH}, s{sOH}, s48
    v_lshlrev_b32 v3, 4, v2
    s_lshl_b32 s36, s31, 1
    s_lshr_b32 s37, s30, 1
    s_add_u32 s36, s36, s37
    s_mul_i32 s36, s36, 40960
    s_mul_i32 s37, s32, 5120
    s_add_u32 s36, s36, s37
    s_add_u32 s43, s36, {WS_H}
    s_mul_i32 s44, s30, 5120
    s_add_u32 s44, s44, {HR}
    s_waitcnt lgkmcnt(0)
    s_add_u32 s16, s28, {WS_G}
    s_addc_u32 s17, s29, 0
    s_mov_b32 s18, {108*65536}
    s_mov_b32 s19, 0x00020000
    """)
    stamp(a, 0)
    srd(a, 8, 4, 1728 * 1280); srd(a, 12, 28, WS_SIZE); srd(a, 20, 6, 2048 * 1280)
    ACC = 176
    FA = 24
    HB = 48
    vA = 17
    NK = 14
    seq = []
    def loads(x):
        sl = x % R_
        t = []
        def w(n):
            def f():
                a(f"buffer_load_dwordx4 v{VO+n}, s[8:11], s{sOW} offen offset:{WO[n]} lds"); seq.append(("w", x, n))
            return f
        def h(q):
            def f():
                a(f"buffer_load_dwordx4 {vr(HB+16*sl+4*q,4)}, v{VH+q}, s[16:19], s{sOH} offen"); seq.append(("h", x, q))
            return f
        t.append(lambda: a(f"s_add_u32 m0, s{sMW}, {sl*5120}"))
        t.append(h(0))
        t += [w(0), w(1), w(2)]
        t.append(lambda: a(f"s_add_u32 m0, s{sMW}, {sl*5120+3072}"))
        t.append(h(1))
        t += [w(3), w(4), h(2), h(3)]
        t.append(lambda: a(f"s_add_u32 s{sOW}, s{sOW}, {4*40960}\ns_add_u32 s{sOH}, s{sOH}, {4*131072}\ns_cmp_eq_u32 s{sOW}, s51\ns_cselect_b32 s{sOW}, s49, s{sOW}\ns_cselect_b32 s{sOH}, s50, s{sOH}"))
        return t
    for x in range(R_ - 1):
        for f in loads(x): f()
        if x == 1:
            a(f"s_mov_b32 m0, s44")
            for n in range(4):
                a(f"buffer_load_dwordx4 v3, s[12:15], s43 offen offset:{1024*n} lds"); seq.append(("r", n))
            a(f"s_add_u32 m0, s44, 4096\ns_add_u32 s43, s43, 4096")
            a(f"buffer_load_dwordx4 v3, s[12:15], s43 offen lds"); seq.append(("r", 4))
    a(f"""
    v_lshrrev_b32 v4, 5, v2
    v_lshlrev_b32 v4, 4, v4
    v_bfe_u32 v5, v2, 2, 3
    v_add_u32 v4, v4, v5             ; f = 16*(g>>1) + 4*(g&1) + (s>>2)
    v_mul_u32_u24 v4, 160, v4
    v_and_b32 v5, 3, v2
    v_lshl_add_u32 v4, v5, 3, v4
    v_add_u32 v{vA}, s{sMW}, v4
    """)
    def wv(key):
        n = len(seq) - 1 - seq.index(key)
        a(f"s_waitcnt vmcnt({n})")
    def RA(x, e):
        for i in range(2): a(f"ds_read_b64_tr_b16 {vr(FA+4*e+2*i,2)}, v{vA} offset:{(x%R_)*5120 + i*8*160 + e*32}")
    wv(("w", 0, 4))
    stamp(a, 1); stampc(a, 14)
    for e in range(5): RA(0, e)
    for x in range(NK):
        fill = loads(x + R_ - 1) if x + R_ - 1 < NK else []
        fill = list(fill)
        wv(("h", x, 3))
        for e in range(5):
            last = x == NK - 1
            a(f"s_waitcnt lgkmcnt({8 if not last else 8 - 2*e})")
            for q in range(4):
                d = ACC + 16 * e + 4 * q
                a(f"v_mfma_f32_16x16x32_bf16 {vr(d,4)}, {vr(FA+4*e,4)}, {vr(HB+16*(x%R_)+4*q,4)}, {vr(d,4) if x else 0}")
                if fill and q < 3: fill.pop(0)()
            if not last:
                if e == 0: wv(("w", x + 1, 4))
                RA(x + 1, e)
        assert not fill
    stamp(a, 2); stampc(a, 15)
    a(f"""
    v_add_u32 v4, s{sMW}, v3
    s_xor_b32 s36, s30, 1
    s_mul_i32 s36, s36, {RING}
    v_add_u32 v5, s36, v3
    s_xor_b32 s36, s30, 2
    s_mul_i32 s36, s36, {RING}
    v_add_u32 v6, s36, v3
    s_xor_b32 s36, s30, 3
    s_mul_i32 s36, s36, {RING}
    v_add_u32 v7, s36, v3
    v_lshrrev_b32 v8, 2, v2
    v_lshlrev_b32 v8, 6, v8
    v_and_b32 v9, 3, v2
    v_lshl_add_u32 v8, v9, 3, v8
    s_and_b32 s36, s30, 1
    s_lshl_b32 s36, s36, 5
    s_add_u32 s36, s36, s44
    v_add_u32 v8, s36, v8
    """)
    for q in (1, 2, 3):
        for e in range(5): a(f"ds_write_b128 v4, {vr(ACC+16*e+4*q,4)} offset:{(q*5+e)*1024}")
    RS = 24
    for e in range(5): a(f"ds_read_b64_tr_b16 {vr(RS+2*e,2)}, v8 offset:{e*1024}")
    a(f"""
    v_and_b32 v9, 15, v2
    v_mul_u32_u24 v9, 1280, v9
    v_lshrrev_b32 v10, 4, v2
    v_lshl_add_u32 v9, v10, 3, v9
    s_lshl_b32 s36, s31, 2
    s_add_u32 s36, s36, s30
    s_mul_i32 s36, s36, {16*1280}
    s_mul_i32 s37, s32, 160
    s_add_u32 s36, s36, s37
    s_waitcnt lgkmcnt(0)
    s_barrier
    """)
    X = 48
    stamp(a, 3)
    for e in range(5):
        for q in (1, 2, 3): a(f"ds_read_b128 {vr(X+12*e+4*(q-1),4)}, v{4+q} offset:{(q*5+e)*1024}")
    for e in range(5):
        d = ACC + 16 * e
        for i in range(2):
            a(f"v_lshlrev_b32 v{36+2*i}, 16, v{RS+2*e+i}\nv_and_b32 v{37+2*i}, 0xffff0000, v{RS+2*e+i}")
        for i in range(2): a(f"v_pk_add_f32 {vr(d+2*i,2)}, {vr(d+2*i,2)}, {vr(36+2*i,2)}")
        a(f"s_waitcnt lgkmcnt({12-3*e})")
        for i in range(2): a(f"v_pk_add_f32 {vr(X+12*e+2*i,2)}, {vr(X+12*e+2*i,2)}, {vr(X+12*e+4+2*i,2)}")
        for i in range(2): a(f"v_pk_add_f32 {vr(d+2*i,2)}, {vr(d+2*i,2)}, {vr(X+12*e+8+2*i,2)}")
        for i in range(2): a(f"v_pk_add_f32 {vr(d+2*i,2)}, {vr(d+2*i,2)}, {vr(X+12*e+2*i,2)}")
        for i in range(2): a(f"v_cvt_pk_bf16_f32 v{d+4+i}, v{d+2*i}, v{d+2*i+1}")
        a(f"buffer_store_dwordx2 {vr(d+4,2)}, v9, s[20:23], s36 offen offset:{32*e}")
    stamp(a, 4)
    stamp_dump(a, 3, 5)
    a(f"{L}_end:\ns_endpgm")
    return dict(label=L, grid=256, block=256, lds=HR + 4 * 5120, vgpr=256, agpr=0)
```

```python
from asmx import *
from layout import *
from colsum import emit_colsum

LOG2E = 1.4426950408889634
def fbits(x):
    import struct
    return "0x%08x" % struct.unpack("<I", struct.pack("<f", x))[0]

def cmuls(a, lst):
    for d, x, y in lst:
        a(f"v_pk_mul_f32 {vr(d,2)}, {vr(x,2)}, {vr(y,2)} op_sel:[0,0] op_sel_hi:[0,1]")
    for d, x, y in lst:
        a(f"v_pk_fma_f32 {vr(d,2)}, {vr(x,2)}, {vr(y,2)}, {vr(d,2)} op_sel:[1,1,0] op_sel_hi:[1,0,1] neg_lo:[0,1,0]")

def zbases(a, lst, va, vphi, tmp):
    for k, (d, r) in enumerate(lst):
        if r == 1:
            a(f"v_exp_f32 {vr(tmp+k)}, {vr(va)}")
            a(f"v_fract_f32 {vr(d+1)}, {vr(vphi)}")
        else:
            a(f"v_mul_f32 {vr(tmp+k)}, {fbits(r)}, {vr(va)}")
            a(f"v_mul_f32 {vr(d+1)}, {fbits(r)}, {vr(vphi)}")
    for k, (d, r) in enumerate(lst):
        if r != 1:
            a(f"v_exp_f32 {vr(tmp+k)}, {vr(tmp+k)}")
            a(f"v_fract_f32 {vr(d+1)}, {vr(d+1)}")
    for k, (d, r) in enumerate(lst):
        a(f"v_cos_f32 {vr(d)}, {vr(d+1)}")
        a(f"v_sin_f32 {vr(d+1)}, {vr(d+1)}")
    for k, (d, r) in enumerate(lst):
        a(f"v_mul_f32 {vr(d)}, {vr(d)}, {vr(tmp+k)}")
        a(f"v_mul_f32 {vr(d+1)}, {vr(d+1)}, {vr(tmp+k)}")

TS = 528
TCH = 64 * TS
LN_S = 1344

def rho(i, h): return 8 * (i >> 2) + 4 * h + (i & 3)

def emit_A(a, L):
    LN0 = 0; TB0 = 8 * LN_S
    kernel_head(a, L)
    a(f"""
    s_cmp_ge_u32 s2, 256
    s_cbranch_scc1 {L}_end
    s_load_dwordx4 s[4:7], s[0:1], 0
    s_load_dwordx8 s[16:23], s[0:1], 16
    s_load_dwordx4 s[24:27], s[0:1], 48
    s_load_dwordx2 s[28:29], s[0:1], 120
    v_lshrrev_b32 v1, 6, v0
    v_and_b32 v2, 63, v0            ; lane
    s_and_b32 s3, s2, 7
    s_lshr_b32 s33, s2, 3           ; i>>3
    v_readfirstlane_b32 s30, v1     ; wave
    s_lshl_b32 s31, s3, 5
    s_add_u32 s31, s31, s33         ; tb
    s_mul_i32 s32, s3, 27
    s_add_u32 s32, s32, s33
    v_lshrrev_b32 v3, 5, v0
    v_and_b32 v4, 31, v0
    v_mul_u32_u24 v5, 1280, v3
    v_lshl_add_u32 v5, v4, 4, v5    ; row*1280 + 16j
    v_lshlrev_b32 v6, 3, v4
    v_sub_u32 v6, v5, v6            ; row*1280 + 8j
    s_mul_i32 s34, s31, 10240
    s_waitcnt lgkmcnt(0)
    """)
    stamp(a, 0)
    srd(a, 8, 4, 2048 * 1280); srd(a, 12, 28, WS_SIZE)
    a(f"""
    buffer_load_dwordx4 v[8:11], v5, s[8:11], s34 offen
    buffer_load_dwordx4 v[12:15], v5, s[8:11], s34 offen offset:512
    buffer_load_dwordx2 v[16:17], v6, s[8:11], s34 offen offset:1024
    s_mul_i32 s35, s32, 3
    v_and_b32 v7, 127, v0
    v_lshlrev_b32 v7, 1, v7
    """)
    PB = 20
    for k in range(3):
        a(f"""
        s_add_u32 s36, s35, {k}
        s_min_u32 s{40+k}, s36, 639
        s_lshl_b32 s36, s{40+k}, 8
        v_add_u32 v18, s36, v7
        s_lshl_b32 s36, s{40+k}, 1
        v_mov_b32 v19, s36
        """)
        for j, sb in enumerate((6, 16, 18, 20, 22, 24)):
            a(f"global_load_short_d16_hi v{PB+8*k+j}, v18, s[{sb}:{sb+1}]")
        a(f"global_load_short_d16_hi v{PB+8*k+6}, v19, s[26:27]")
    a(f"""
    s_getpc_b64 s[48:49]
    {L}_pc:
    s_mov_b32 s50, code_end-{L}_pc
    s_mov_b32 s51, 0x00020000
    s_and_b32 s36, s33, 3
    s_lshl_b32 s36, s36, 14
    v_lshlrev_b32 v95, 6, v0
    buffer_load_dword v95, v95, s[48:51], s36 offen
    """)
    a(f"""
    s_mov_b32 s37, 0x3f803f80
    v_mov_b32 v44, 0
    v_mov_b32 v45, 0
    s_waitcnt vmcnt(22)
    """)
    stamp(a, 1)
    for i in range(10):
        a(f"v_dot2_f32_bf16 v44, v{8+i}, s37, v44")
        a(f"v_dot2_f32_bf16 v45, v{8+i}, v{8+i}, v45")
    for sh in ("quad_perm:[1,0,3,2]", "quad_perm:[2,3,0,1]", "row_half_mirror", "row_mirror"):
        a(f"v_add_f32_dpp v44, v44, v44 {sh} row_mask:0xf bank_mask:0xf")
        a(f"v_add_f32_dpp v45, v45, v45 {sh} row_mask:0xf bank_mask:0xf")
    a(f"""
    v_mov_b32 v46, v44
    v_mov_b32 v47, v45
    v_permlane16_swap_b32 v44, v46
    v_permlane16_swap_b32 v45, v47
    v_add_f32 v44, v44, v46
    v_add_f32 v45, v45, v47
    v_mul_f32 v44, {fbits(1/640)}, v44        ; mean
    v_mul_f32 v45, {fbits(1/640)}, v45
    v_fma_f32 v45, -v44, v44, v45
    v_max_f32 v45, 0, v45                     ; var
    v_cvt_pk_bf16_f32 v46, v44, v45
    v_and_b32 v45, 0xffff0000, v46
    v_lshlrev_b32 v44, 16, v46                ; bf16(mean)
    v_add_f32 v45, {fbits(1e-5)}, v45
    v_cvt_pk_bf16_f32 v45, v45, v45
    v_and_b32 v45, 0xffff0000, v45
    v_sqrt_f32 v45, v45
    v_cvt_pk_bf16_f32 v47, v44, v45           ; (m, s) packed
    v_and_b32 v45, 0xffff0000, v47
    v_rcp_f32 v45, v45
    """)
    for i in range(10):
        a(f"v_lshlrev_b32 v{48+2*i}, 16, v{8+i}")
        a(f"v_and_b32 v{49+2*i}, 0xffff0000, v{8+i}")
    for i in range(10):
        a(f"v_pk_add_f32 {vr(48+2*i,2)}, {vr(48+2*i,2)}, v[44:45] op_sel_hi:[1,0] neg_lo:[0,1] neg_hi:[0,1]")
    for i in range(10):
        a(f"v_pk_mul_f32 {vr(48+2*i,2)}, {vr(48+2*i,2)}, v[44:45] op_sel:[0,1] op_sel_hi:[1,1]")
    for i in range(10):
        a(f"v_cvt_pk_bf16_f32 v{8+i}, v{48+2*i}, v{49+2*i}")
    a(f"""
    v_mul_u32_u24 v5, {LN_S}, v3
    v_lshl_add_u32 v6, v4, 3, v5
    v_lshl_add_u32 v5, v4, 4, v5
    ds_write_b128 v5, v[8:11] offset:{LN0}
    ds_write_b128 v5, v[12:15] offset:{LN0+512}
    ds_write_b64 v6, v[16:17] offset:{LN0+1024}
    s_lshl_b32 s36, s31, 5
    s_add_u32 s36, s36, {WS_STATS}
    v_lshlrev_b32 v5, 2, v3
    v_cmp_eq_u32 vcc, 0, v4
    v_bfe_u32 v6, v2, 2, 2                    ; s>>2
    v_mul_u32_u24 v6, {LN_S}, v6
    v_and_b32 v18, 3, v2
    v_lshl_add_u32 v6, v18, 3, v6
    v_lshrrev_b32 v18, 4, v2
    v_lshl_add_u32 v6, v18, 5, v6
    s_lshl_b32 s38, s30, 7
    v_add_u32 v6, s38, v6
    s_lshl_b32 s38, s30, 18                   ; wave*64*4096
    v_lshl_add_u32 v46, v2, 12, s38
    s_lshl_b32 s39, s31, 4
    s_add_u32 s39, s39, {WS_UT}
    s_waitcnt vmcnt(0)
    s_and_saveexec_b64 s[44:45], vcc
    buffer_store_dword v47, v5, s[12:15], s36 offen
    s_mov_b64 exec, s[44:45]
    s_waitcnt lgkmcnt(0)
    s_barrier
    """)
    for n in range(3):
        a(f"ds_read_b64_tr_b16 {vr(8+4*n,2)}, v6 offset:{LN0+512*n}")
        a(f"ds_read_b64_tr_b16 {vr(10+4*n,2)}, v6 offset:{LN0+512*n+4*LN_S}")
    a(f"""
    s_waitcnt lgkmcnt(4)
    buffer_store_dwordx4 v[8:11], v46, s[12:15], s39 offen
    s_add_u32 s39, s39, {256*4096}
    s_waitcnt lgkmcnt(2)
    buffer_store_dwordx4 v[12:15], v46, s[12:15], s39 offen
    s_add_u32 s39, s39, {256*4096}
    s_waitcnt lgkmcnt(0)
    s_cmp_ge_u32 s30, 2
    s_cbranch_scc1 {L}_k0
    buffer_store_dwordx4 v[16:19], v46, s[12:15], s39 offen
    {L}_k0:
    s_cmp_ge_u32 s33, 27
    s_cbranch_scc1 {L}_idle
    s_cmp_ge_u32 s32, 214
    s_cbranch_scc1 {L}_done
    """)
    stamp(a, 2)
    for k in range(3):
        p = PB + 8 * k
        a(f"""
        v_mul_f32 v44, {fbits(LOG2E)}, v{p+6}
        v_mov_b32 v46, {fbits(LOG2E)}
        v_fma_f32 v45, v{p+6}, v46, -v44
        v_fmac_f32 v45, 0x32a57060, v{p+6}
        v_exp_f32 v44, v44
        v_mul_f32 v45, {fbits(0.6931471805599453)}, v45
        v_fma_f32 v44, v44, v45, v44
        v_cvt_pk_bf16_f32 v44, v44, v44
        v_and_b32 v{p+6}, 0xffff0000, v44           ; dt
        v_mul_f32 v{p}, v{p}, v{p+6}
        v_mul_f32 v{p+1}, v{p+1}, v{p+6}
        v_mul_f32 v{p}, {fbits(LOG2E)}, v{p}
        v_mul_f32 v{p+1}, 0.15915494, v{p+1}
        """)
    a(f"""
    s_and_b32 s36, s30, 1
    s_lshl_b32 s36, s36, 8
    s_add_u32 m0, s36, {TB0}
    s_cmp_ge_u32 s30, 2
    s_cbranch_scc1 {L}_pa
    """)
    def wr(src, ch, row, neg=False, t=[0]):
        r = 60 + (t[0] & 3); t[0] += 1
        a(f"v_cvt_pk_bf16_f32 v{r}, v{src}, {'-' if neg else ''}v{src+1}")
        rows = row if isinstance(row, list) else [row]
        for x in rows:
            off = ch * TCH + x * TS
            assert off < 65536 or True
            a(f"ds_write_addtid_b32 v{r} offset:{off}") if off < 65536 else None
    for k in range(3):
        p = PB + 8 * k
        if k: a(f"s_add_u32 m0, m0, {TCH}")
        Z8, = (44,)
        c = [[46, 48, 50, 52], [64, 66, 68, 70]]
        zbases(a, [(Z8, 8), (c[0][1], 64)], p, p + 1, 56)
        a(f"v_mov_b32 v58, 0x00003f80")
        a(f"ds_write_addtid_b32 v58 offset:{32*TS}")
        cmuls(a, [(c[0][2], c[0][1], c[0][1]), (c[0][0], Z8, Z8)])
        wr(Z8, 0, 33); wr(c[0][1], 0, 40)
        cmuls(a, [(c[0][3], c[0][2], c[0][1])])
        wr(c[0][0], 0, 34); wr(c[0][2], 0, 48); wr(c[0][3], 0, 56)
        for s in range(1, 8):
            src, dst = c[(s + 1) & 1], c[s & 1]
            lst = [(dst[q], src[q], Z8) for q in range(4) if q or s <= 5]
            cmuls(a, lst)
            for q in range(4):
                if q: wr(dst[q], 0, 32 + 8 * q + s)
                elif s <= 5: wr(dst[q], 0, 32 + s + 2)
    a(f"s_branch {L}_mm\n{L}_pa:")
    for k in range(3):
        p = PB + 8 * k
        if k: a(f"s_add_u32 m0, m0, {TCH}")
        Z1, Z8, Z256 = 44, 46, 48
        T = [64 + 2 * i for i in range(12)]
        zbases(a, [(Z1, 1), (Z8, 8), (Z256, 256)], p, p + 1, 56)
        a(f"v_pk_mul_f32 {vr(p+2,2)}, {vr(p+2,2)}, {vr(p+6,2)} op_sel_hi:[1,0]")
        cmuls(a, [(T[0], p + 4, p + 2), (50, Z1, Z1)])
        wr(T[0], 0, rho(0, 0), True)
        cmuls(a, [(T[1], T[0], Z1), (T[2], T[0], 50), (52, 50, 50), (T[8], T[0], Z256)])
        wr(T[1], 0, rho(1, 0), True); wr(T[2], 0, rho(2, 0), True); wr(T[8], 0, [rho(0, 1), rho(1, 1)], True)
        cmuls(a, [(T[3], T[1], 50), (T[4], T[0], 52), (T[5], T[1], 52), (T[6], T[2], 52), (T[9], T[2], Z256), (T[10], T[8], Z8)])
        for i in (3, 4, 5, 6): wr(T[i], 0, rho(i, 0), True)
        wr(T[9], 0, rho(2, 1), True); wr(T[10], 0, rho(7, 1), True)
        cmuls(a, [(T[7], T[3], 52), (T[0], T[4], Z256), (T[1], T[6], Z256), (T[2], T[8], Z256), (T[5], T[10], Z256)])
        wr(T[7], 0, rho(7, 0), True); wr(T[0], 0, [rho(3, 1), rho(4, 1), rho(5, 1)], True); wr(T[1], 0, rho(6, 1), True)
        wr(T[2], 0, rho(8, 0), True); wr(T[5], 0, rho(10, 0), True)
        cmuls(a, [(T[3], T[0], Z256), (T[8], T[2], Z256), (T[10], T[5], Z256)])
        wr(T[3], 0, rho(9, 0), True); wr(T[8], 0, rho(8, 1), True); wr(T[10], 0, rho(10, 1), True)
        cmuls(a, [(T[0], T[3], Z256), (T[2], T[8], Z256), (T[5], T[10], Z256)])
        wr(T[0], 0, rho(9, 1), True); wr(T[2], 0, rho(11, 0), True); wr(T[5], 0, rho(12, 0), True)
        x, y, x2, y2 = T[2], T[5], T[8], T[10]
        for (i, h) in ((11, 1), (13, 0), (13, 1)):
            cmuls(a, [(x2, x, Z256), (y2, y, Z256)])
            wr(x2, 0, rho(i, h), True); wr(y2, 0, rho(i + 1, h), True)
            x, y, x2, y2 = x2, y2, x, y
    a(f"""
    {L}_mm:
    v_and_b32 v4, 31, v2
    v_lshrrev_b32 v5, 5, v2
    v_mul_u32_u24 v6, {TS}, v4
    v_lshl_add_u32 v6, v5, 4, v6
    s_mul_i32 s36, s30, {TCH}
    s_add_u32 s36, s36, {TB0}
    v_add_u32 v6, s36, v6
    s_waitcnt lgkmcnt(0)
    s_barrier
    s_cmp_ge_u32 s30, 3
    s_cbranch_scc1 {L}_done
    """)
    D = 64; FA = 8; FB = 24
    stamp(a, 3)
    def rd(s):
        a(f"ds_read_b128 {vr(FA+4*(s&3),4)}, v6 offset:{32*s}")
        a(f"ds_read_b128 {vr(FB+4*(s&3),4)}, v6 offset:{32*TS+32*s}")
    for s in range(3): rd(s)
    for s in range(16):
        if s + 3 < 16: rd(s + 3)
        a(f"s_waitcnt lgkmcnt({2*min(3, 15-s)})")
        a(f"v_mfma_f32_32x32x16_bf16 {vr(D,16)}, {vr(FA+4*(s&3),4)}, {vr(FB+4*(s&3),4)}, {vr(D,16) if s else 0}")
    a(f"""
    s_cmp_eq_u32 s30, 1
    s_cselect_b32 s36, s41, s40
    s_cmp_eq_u32 s30, 2
    s_cselect_b32 s36, s42, s36
    s_lshl_b32 s36, s36, 12
    s_add_u32 s36, s36, {WS_K}
    v_lshlrev_b32 v4, 2, v4
    v_lshl_add_u32 v4, v5, 7, v4
    v_sub_u32 v4, 252, v4
    v_and_b32 v5, 1, v2
    v_cmp_eq_u32 vcc, 0, v5
    """)
    SS = 1024
    def st(r, sig, lam0):
        a(f"buffer_store_dword v{r}, v4, s[12:15], s36 offen offset:{sig*SS + 768 - 2*lam0}")
    for sg in range(4): a(f"v_cvt_pk_bf16_f32 v{8+sg}, v{D+4+sg}, v{D+sg}")
    a(f"""
    v_cvt_pk_bf16_f32 v12, v{D+9}, v{D+8}
    v_cvt_pk_bf16_f32 v13, v{D+10}, v{D+8}
    v_cvt_pk_bf16_f32 v14, v{D+10}, v{D+9}
    v_cndmask_b32 v20, v{D+12}, v{D+11}, vcc
    v_cndmask_b32 v21, v{D+14}, v{D+13}, vcc
    v_cvt_pk_bf16_f32 v15, v20, v{D+11}
    v_cvt_pk_bf16_f32 v16, v{D+12}, v{D+11}
    v_cvt_pk_bf16_f32 v17, v21, v{D+13}
    v_cvt_pk_bf16_f32 v18, v{D+14}, v{D+13}
    """)
    for sg in range(4): st(8 + sg, sg, 0)
    for sg in range(4): st((12, 12, 13, 14)[sg], sg, 128)
    for sg in range(4): st((15, 16, 16, 16)[sg], sg, 256)
    for sg in range(4): st((17, 18, 18, 18)[sg], sg, 384)
    a(f"""
    {L}_done:
    """)
    stamp_dump(a, 0, 4)
    a(f"""
    s_endpgm
    {L}_idle:
    s_load_dwordx2 s[6:7], s[0:1], 80
    s_sub_u32 s34, s33, 27
    s_lshl_b32 s34, s34, 3
    s_add_u32 s34, s34, s3
    s_cmp_ge_u32 s34, 27
    s_cbranch_scc1 {L}_end
    s_waitcnt lgkmcnt(0)
    """)
    emit_colsum(a, L, 6, 12, 34, WS_CS, TB0)
    stamp_dump(a, 0, 4)
    a(f"{L}_end:\ns_endpgm")
    return dict(label=L, grid=256, block=256, lds=TB0 + 3 * TCH, vgpr=96, agpr=0)
```

```python
import sys, re
sys.path.insert(0, "gen")
from asmx import *
import asmx, copy

class E:
    def __init__(s):
        s.a = Asm(); s.vm = {}; s.lg = {}; s.nid = 0; s.ool = []
        s.nwait = 0
    def label(s, b="L"): return s.a.label(b)
    def _wait(s, nv, nl):
        if nv is None and nl is None: return
        t = "s_waitcnt"
        if nv is not None: t += f" vmcnt({min(nv,63)})"
        if nl is not None: t += f" lgkmcnt({min(nl,15)})"
        s.a(t); s.nwait += 1
        s._apply(None if nv is None else min(nv, 63), None if nl is None else min(nl, 15))
    def _apply(s, nv, nl):
        if nv is not None: s.vm = {k: v for k, v in s.vm.items() if v[1] < nv}
        if nl is not None:
            if nl == 0: s.lg = {}
            elif not any(v[3] == "smem" for v in s.lg.values()): s.lg = {k: v for k, v in s.lg.items() if v[1] < nl}
    def __call__(s, txt, tag=None):
        for x in txt.split("\n"):
            x = x.strip()
            if x == "" or x.startswith(";"): continue
            s.emit(x, tag)
        return s
    def emit(s, x, tag=None):
        i = Ins(x)
        if i.op == "s_waitcnt":
            m = re.search(r"vmcnt\((\d+)\)", x); nv = int(m.group(1)) if m else None
            m = re.search(r"lgkmcnt\((\d+)\)", x); nl = int(m.group(1)) if m else None
            s.a(x); s._apply(nv, nl); return
        nv = nl = None
        for k, v in s.vm.items():
            hit = v[0] & i.r or (v[0] & i.w and i.kind != "vmem")
            if hit: nv = v[1] if nv is None else min(nv, v[1])
        for k, v in s.lg.items():
            hit = v[0] & i.r or (v[0] & i.w and not (i.kind == "ds" and v[3] == "ds"))
            if hit: nl = v[1] if nl is None else min(nl, v[1])
        if nl is not None and any(v[3] == "smem" for v in s.lg.values()): nl = 0
        s._wait(nv, nl)
        s.a(x)
        if i.kind == "vmem":
            for v in s.vm.values(): v[1] += 1
            s.nid += 1; s.vm[s.nid] = [frozenset(i.w), 0, tag, "vmem"]
        if i.kind in ("ds", "smem"):
            for v in s.lg.values(): v[1] += 1
            s.nid += 1; s.lg[s.nid] = [frozenset(i.w), 0, tag, i.kind]
    def need(s, *tags):
        nv = nl = None
        for v in s.vm.values():
            if v[2] in tags: nv = v[1] if nv is None else min(nv, v[1])
        for v in s.lg.values():
            if v[2] in tags: nl = v[1] if nl is None else min(nl, v[1])
        if nl is not None and any(v[3] == "smem" for v in s.lg.values()): nl = 0
        return nv, nl
    def wait(s, *tags): s._wait(*s.need(*tags))
    def waitregs(s, regs):
        rs = set(("v", r) if r < 256 else ("a", r - 256) for r in regs)
        nv = nl = None
        for v in s.vm.values():
            if v[0] & rs: nv = v[1] if nv is None else min(nv, v[1])
        for v in s.lg.values():
            if v[0] & rs: nl = v[1] if nl is None else min(nl, v[1])
        s._wait(nv, nl)
    def waitlg(s):
        if s.lg: s._wait(None, 0)
    def waitvm(s):
        if s.vm: s._wait(0, None)
    def barrier(s, *tags):
        nv, _ = s.need(*tags)
        s._wait(nv, 0 if s.lg else None)
        s.a("s_barrier")
    def snap(s): return (copy.deepcopy(s.vm), copy.deepcopy(s.lg))
    def restore(s, st): s.vm, s.lg = copy.deepcopy(st[0]), copy.deepcopy(st[1])
    def join(s, *sts):
        for st in sts:
            for cur, o in ((s.vm, st[0]), (s.lg, st[1])):
                for k, v in o.items():
                    if k in cur: cur[k][1] = min(cur[k][1], v[1])
                    else: cur[k] = list(v)

def cls_of(t):
    op = t.strip().split()[0]
    if op.startswith("ds_"): return "ds"
    if op.startswith(("buffer_", "global_")): return "vm"
    if op.startswith("v_"): return "va"
    return "sa"

class Sched:
    def __init__(s, e):
        s.e = e; s.m = []; s.g = []; s.use = []
    def mfma(s, text, pre=None):
        s.m.append((text, pre)); s.g.append([]); big = "32x32" in text
        s.use.append({"tot": 0.0, "ds": 0, "ctot": 5.0 if big else 2.0, "cds": 3 if big else 1})
        return len(s.m) - 1
    def put(s, item, lo, hi=None, cost=None, cls=None, tag=None, force=False):
        if cls is None: cls = cls_of(item) if isinstance(item, str) else "sa"
        if cost is None: cost = {"ds": 1, "vm": 2, "va": 1, "sa": 1}[cls]
        lo = max(lo, 0); last = len(s.m) - 1
        hi = last if hi is None else min(hi, last)
        lo = min(lo, hi)
        pick = None
        if force: pick = lo
        else:
            for i in range(lo, hi + 1):
                u = s.use[i]
                if u["tot"] + cost <= u["ctot"] + 1e-9 and (cls != "ds" or u["ds"] < u["cds"]): pick = i; break
            if pick is None:
                pick = min(range(lo, hi + 1), key=lambda i: ((s.use[i]["tot"] + cost) / s.use[i]["ctot"] + (1 if cls == "ds" and s.use[i]["ds"] >= s.use[i]["cds"] else 0), i))
        s.use[pick]["tot"] += cost
        if cls == "ds": s.use[pick]["ds"] += 1
        s.g[pick].append((item, tag))
        return pick
    def chain(s, items, lo, hi=None, step=0, **kw):
        g = lo
        for it in items:
            tag = None
            if isinstance(it, tuple): it, tag = it
            g = s.put(it, g, hi, tag=tag, **kw) + step
        return g - step
    def emit(s):
        e = s.e
        for (t, pre), g in zip(s.m, s.g):
            if pre: pre(e)
            e(t)
            for it, tag in g:
                if isinstance(it, str): e(it, tag)
                else: it(e)
    def report(s, name=""):
        over = sum(max(0, u["tot"] - u["ctot"]) for u in s.use)
        print(f"[sched {name}] mfma={len(s.m)} sides={sum(len(g) for g in s.g)} overload={over}", file=sys.stderr)
```

```python
WS_EP = 0
WS_ST = 0x10000
WS_CS = 0x40000
WS_P = 0x50000
WS_H1 = 0x100000
WS_H2 = 0x400000
WS_WD = 0xC00000
WS_DBG = 32 << 20
WS_SIZE = 64 << 20
TS = 528; TCH = 64 * TS
WSLOT = 7424; UPOFF = 3712
RING = 88960
KU0 = 3 * TCH; IMG1 = 4368; KSZ = 8704; UPAD = 416; CHS = KSZ + UPAD + 4096
YPS = 4160
YB = [89088, KU0 + 3 * CHS, RING + 65536]
CB = YB[2] + 8256
LDS_SIZE = 163840
assert CB + 33 * 32 <= LDS_SIZE
FAC = RING + 65536
sWS, sX, sWG, sWU, sWD, sT4 = 4, 8, 12, 16, 20, 24
sW, sTAG, sBUD, sODD = 28, 29, 30, 31
sC3456 = 32
sWB, sRG = 33, 34
sHO = 44
sXX, sN, sM, sSH = 64, 65, 66, 67
sHS = 68
sDT = 71
sDK = 74
sJ8, sFQ, sU0, sTB = 77, 78, 79, 80
sGB = 81
sOUT = 82
sRB = 84
sG2 = 85
sQ = 86
sP = 87
t0, t1, t2, t3, t4, t5 = 88, 89, 90, 91, 92, 93
sMK = 94
vTID, vLANE = 0, 1
vSTAMP = 255
vH01, vH2 = 254, 253
vL16 = 252
vW = 236
vWl, vWc = 250, 251
vG32, vG16 = 248, 249
TBL = YB[1]
INV = TBL + 6144
WT = 150016
aRES = 244

def pos(p):
    half = p >> 7; q = p & 127; ge = int(q >= 78); r0 = q - 78 * ge; div = 25 if ge else 26
    l0 = r0 // div; r = r0 - l0 * div; nT = 14 if ge else 12; line = l0 + 3 * ge; ac = 64 * half + 36 * ge + nT * l0
    isD = int(r >= nT); ch0 = 320 * half + 64 * line + (nT + 2 * r if isD else 3 * r)
    return ch0, isD, (p - ac - nT if isD else ac + r)
def chan(row):
    if row < 512: return pos(row & 255)[0] + (row >> 8)
    return [pos(p)[0] + 2 for p in range(256) if not pos(p)[1]][row - 512]
```

```python
from em import *
from lay import *
sys.path.insert(0, "gen")
from phA import fbits, LOG2E, cmuls, zbases, rho

class Ctx: pass
DEV = Ctx(); DEV.prof = False; DEV.n = 0; DEV.names = []
def stamp(e, name):
    if not DEV.prof: return
    if name in DEV.names: i = DEV.names.index(name)
    else: i = len(DEV.names); DEV.names.append(name)
    e(f"s_memrealtime s[100:101]\ns_waitcnt lgkmcnt(0)\nv_writelane_b32 v{vSTAMP}, s100, {i}")
def stampc(e, name):
    if not DEV.prof: return
    if name in DEV.names: i = DEV.names.index(name)
    else: i = len(DEV.names); DEV.names.append(name)
    e(f"s_memtime s[100:101]\ns_waitcnt lgkmcnt(0)\nv_writelane_b32 v{vSTAMP}, s100, {i}")
def stamp_dump(e):
    if not DEV.prof: return
    stamp(e, "end")
    e(f"""
    s_lshl_b32 s{t0}, s2, 2
    s_add_u32 s{t0}, s{t0}, s{sW}
    s_lshl_b32 s{t0}, s{t0}, 8
    s_add_u32 s{t0}, s{t0}, {WS_DBG}
    v_lshlrev_b32 v2, 2, v{vLANE}
    buffer_store_dword v{vSTAMP}, v2, s[{sWS}:{sWS+3}], s{t0} offen
    """)

XR = 8; PB = 20; XG = 96; SP = 112; XF = 128; UF = 152; RS = 176; MR = 184
vONE = 192
vEP = 196
vSPA = 197
def srd2(e, d, lo, nbytes):
    e(f"s_mov_b32 s{d}, s{lo}\ns_mov_b32 s{d+1}, s{lo+1}\ns_mov_b32 s{d+2}, {nbytes}\ns_mov_b32 s{d+3}, 0x00020000")

def prologue(e):
    e(f"""
    s_cmp_ge_u32 s2, 256
    s_cbranch_scc1 END
    s_load_dwordx16 s[32:47], s[0:1], 0
    s_load_dwordx16 s[48:63], s[0:1], 64
    v_lshrrev_b32 v2, 6, v0
    v_and_b32 v{vLANE}, 63, v0
    s_and_b32 s{sXX}, s2, 7
    s_lshr_b32 s{sN}, s2, 3
    v_readfirstlane_b32 s{sW}, v2
    s_lshr_b32 s{sJ8}, s{sN}, 2
    s_lshr_b32 s{sFQ}, s{sXX}, 1
    s_and_b32 s{sRB}, s{sXX}, 1
    s_lshl_b32 s{sRB}, s{sRB}, 2
    s_and_b32 s{t0}, s{sN}, 3
    s_add_u32 s{sRB}, s{sRB}, s{t0}
    s_lshl_b32 s{sTB}, s{sRB}, 2
    s_add_u32 s{sTB}, s{sTB}, s{sW}
    s_lshl_b32 s{sP}, s{sTB}, 3
    s_add_u32 s{sP}, s{sP}, s{sJ8}
    s_lshl_b32 s{sP}, s{sP}, 2
    s_add_u32 s{sP}, s{sP}, s{sFQ}
    s_lshl_b32 s{sP}, s{sP}, 7
    s_add_u32 s{sP}, s{sP}, {WS_P}
    s_lshl_b32 s{t4}, s{sXX}, 5
    s_add_u32 s{t4}, s{t4}, s{sN}              ; p
    s_and_b32 s{t0}, s{t4}, 127
    s_cmp_ge_u32 s{t0}, 78
    s_cselect_b32 s{t1}, 78, 0
    s_cselect_b32 s{t2}, 77, 0
    s_cselect_b32 s{t3}, 25, 26
    s_cselect_b32 s96, 14, 12                  ; nT
    s_cselect_b32 s97, 36, 0
    s_cselect_b32 s95, 3, 0
    s_sub_u32 s{t2}, s{t0}, s{t2}
    s_sub_u32 s{t0}, s{t0}, s{t1}
    s_mul_i32 s{t2}, s{t2}, 2521
    s_lshr_b32 s{t2}, s{t2}, 16                ; l0
    s_mul_i32 s{t3}, s{t3}, s{t2}
    s_sub_u32 s{t0}, s{t0}, s{t3}              ; r
    s_add_u32 s95, s95, s{t2}                  ; line
    s_mul_i32 s{t2}, s{t2}, s96
    s_add_u32 s97, s97, s{t2}
    s_lshr_b32 s{t1}, s{t4}, 7
    s_mul_i32 s{t2}, s{t1}, 5
    s_add_u32 s95, s95, s{t2}
    s_lshl_b32 s95, s95, 6
    s_lshl_b32 s{t1}, s{t1}, 6
    s_add_u32 s97, s97, s{t1}                  ; aCum
    s_add_u32 s{t1}, s97, s{t0}                ; a
    s_sub_u32 s97, s{t4}, s97
    s_sub_u32 s97, s97, s96                    ; b
    s_sub_u32 s{t2}, s96, 1
    s_cmp_ge_u32 s{t0}, s96
    s_cselect_b32 s{sODD}, 1, 0
    s_cselect_b32 s{sM}, s97, s{t1}
    s_cselect_b32 s{t2}, s{t2}, s{t0}
    s_lshl_b32 s{t0}, s{t0}, 1
    s_add_u32 s{t2}, s{t2}, s{t0}
    s_add_u32 s{t2}, s{t2}, s95                ; chb
    v_lshrrev_b32 v3, 5, v0
    v_and_b32 v4, 31, v0
    v_mul_u32_u24 v5, 1280, v3
    v_lshl_add_u32 v5, v4, 4, v5
    v_lshlrev_b32 v6, 3, v4
    v_sub_u32 v6, v5, v6
    s_mul_i32 s{t1}, s2, 10240
    s_lshl_b32 s{t3}, s{t2}, 8
    v_and_b32 v7, 127, v0
    v_lshl_add_u32 v7, v7, 1, s{t3}
    s_lshl_b32 s{t3}, s{t2}, 1
    s_and_b32 s{t3}, s{t3}, -4
    s_and_b32 s{sSH}, s{t2}, 1
    s_lshl_b32 s{sSH}, s{sSH}, 4
    v_mov_b32 v{vEP}, 0
    v_mov_b32 v{vONE}, -1
    v_mov_b32 v{vONE+1}, -1
    v_mov_b32 v{vONE+2}, -1
    v_mov_b32 v{vONE+3}, -1
    s_waitcnt lgkmcnt(0)
    """)
    if DEV.prof: e(f"v_mov_b32 v{vSTAMP}, 0")
    stamp(e, "start")
    srd2(e, sWS, 62, WS_SIZE); srd2(e, sX, 32, 2048 * 1280)
    e(f"""
    buffer_load_dword v{vEP}, v{vEP}, s[{sWS}:{sWS+3}], 0 offen sc1
    buffer_load_dwordx4 v[8:11], v5, s[{sX}:{sX+3}], s{t1} offen
    buffer_load_dwordx4 v[12:15], v5, s[{sX}:{sX+3}], s{t1} offen offset:512
    buffer_load_dwordx2 v[16:17], v6, s[{sX}:{sX+3}], s{t1} offen offset:1024
    s_load_dwordx2 s[98:99], s[46:47], s{t3}
    s_load_dwordx2 s[{sDK}:{sDK+1}], s[48:49], s{t3}
    """)
    for k in range(3):
        for j, sb in enumerate((34, 36)): e(f"global_load_short_d16_hi v{PB+8*k+j}, v7, s[{sb}:{sb+1}] offset:{256*k}")
    e(f"s_cmp_lt_u32 s{sW}, 2\ns_cbranch_scc1 A_p1")
    st = e.snap()
    for k in range(3):
        for j, sb in enumerate((38, 40, 42, 44)): e(f"global_load_short_d16_hi v{PB+8*k+2+j}, v7, s[{sb}:{sb+1}] offset:{256*k}")
    e("A_p1:"); e.join(st)
    e(f"""
    v_lshrrev_b32 v2, 3, v0
    s_mov_b32 s{t1}, 81920
    v_mul_lo_u32 v2, v2, s{t1}
    v_and_b32 v4, 7, v0
    s_and_b32 s{t0}, s{sN}, 6
    v_xor_b32 v5, s{t0}, v4
    v_lshl_add_u32 v{vH01}, v5, 4, v2
    s_and_b32 s{t1}, s{sM}, 6
    s_cmp_eq_u32 s{sODD}, 1
    s_cselect_b32 s{t0}, s{t0}, s{t1}
    v_xor_b32 v5, s{t0}, v4
    v_lshl_add_u32 v{vH2}, v5, 4, v2
    s_lshl_b32 s{t0}, s{sXX}, 5
    s_add_u32 s{t0}, s{t0}, s{sN}
    s_lshl_b32 s{t0}, s{t0}, 7
    s_add_u32 s{sHS}, s{t0}, {WS_H1}             ; part 0
    s_add_u32 s{t0}, s{sHS}, 32768               ; part 1
    s_lshl_b32 s{t1}, s{sM}, 7
    s_add_u32 s{t1}, s{t1}, {WS_H1 + 65536}
    s_cmp_eq_u32 s{sODD}, 1
    s_cselect_b32 s{sHS+1}, s{sHS}, s{t0}
    s_cselect_b32 s{sHS+2}, s{t0}, s{t1}
    """)
    for k in range(3):
        e(f"buffer_store_dwordx4 {vr(vONE,4)}, v{vH2 if k == 2 else vH01}, s[{sWS}:{sWS+3}], s{sHS+k} offen sc1", "hclr")
    clear_small(e)
    stamp(e, "iss")
    e(f"s_mov_b32 s{sGB}, s{t3}")
    e(f"v_mul_u32_u24 v{vGA}, 1280, v0")
    if DEV.kw.get("xpf", "0") == "1":
        e(f"""
        v_lshrrev_b32 v2, 2, v0
        v_mul_u32_u24 v2, 1280, v2
        v_and_b32 v4, 3, v0
        v_lshl_add_u32 v2, v4, 6, v2
        s_mul_i32 s{t0}, s{sXX}, 160
        s_and_b32 s{t0}, s{t0}, -128
        s_mul_i32 s{t1}, s{sN}, 81920
        s_add_u32 s{t0}, s{t0}, s{t1}
        buffer_load_dword v199, v2, s[{sX}:{sX+3}], s{t0} offen
        """)
    gather(e, range(int(DEV.kw.get("g0", 2))))
    e(f"""
    s_getpc_b64 s[{sT4}:{sT4+1}]
    A_pc:
    s_mov_b32 s{sT4+2}, code_end-A_pc
    s_mov_b32 s{sT4+3}, 0x00020000
    s_lshl_b32 s{t0}, s{sN}, 12
    s_lshl_b32 s{t1}, s{sW}, 10
    s_add_u32 s{t0}, s{t0}, s{t1}
    v_lshlrev_b32 v198, 6, v{vLANE}
    s_mov_b64 exec, 0xffff
    buffer_load_dword v198, v198, s[{sT4}:{sT4+3}], s{t0} offen
    s_mov_b64 exec, -1
    """)
    srd2(e, sWG, 52, 640 * 3456)
    e(f"""
    s_sub_u32 s{sWU}, s54, {UPOFF}
    s_subb_u32 s{sWU+1}, s55, 0
    s_mov_b32 s{sWU+2}, {640*3456 + UPOFF}
    s_mov_b32 s{sWU+3}, 0x00020000
    s_mov_b32 s{sOUT}, s58
    s_mov_b32 s{sOUT+1}, s59
    """)
    srd2(e, sWD, 56, 1728 * 1280)
    e(f"""
    s_lshl_b32 s{t0}, s{sFQ}, 3
    s_add_u32 s{t0}, s{t0}, s{sJ8}               ; fs
    s_and_b32 s{sQ}, s{t0}, 3
    s_mul_i32 s{sU0}, s{t0}, 27
    s_lshr_b32 s{sU0}, s{sU0}, 2
    s_lshr_b32 s{t0}, s{t0}, 2                   ; gH
    s_mul_i32 s{sG2}, s{t0}, {7*131072}
    s_lshl_b32 s{t0}, s{sTB}, 12
    s_add_u32 s{sG2}, s{sG2}, s{t0}
    s_lshl_b32 s{t0}, s{sQ}, 8
    s_add_u32 s{sG2}, s{sG2}, s{t0}
    s_add_u32 s{sG2}, s{sG2}, {WS_H2}
    s_mul_i32 s{t1}, s{sTB}, 81920
    s_add_u32 s{t1}, s{t1}, {WS_H1}
    """)
    for c in range(8):
        e(f"""
        s_add_u32 s{t0}, s{sJ8}, {c}
        s_and_b32 s{t0}, s{t0}, 7
        s_lshl_b32 s{t0}, s{t0}, 12
        s_add_u32 s{sHO+c}, s{t0}, s{t1}
        """)
    e(f"s_lshr_b32 s{t2}, s{sJ8}, 1")
    for c in range(4):
        e(f"""
        s_add_u32 s{t0}, s{t2}, {c}
        s_and_b32 s{t0}, s{t0}, 3
        s_lshl_b32 s{t0}, s{t0}, 12
        s_add_u32 s{sHO+8+c}, s{t0}, s{t1}
        """)
    e(f"""
    v_lshlrev_b32 v{vL16}, 4, v{vLANE}
    s_mul_i32 s{t0}, s{sW}, 56
    v_add_u32 v2, s{t0}, v{vLANE}
    v_mul_u32_u24 v4, 9363, v2
    v_lshrrev_b32 v4, 16, v4
    v_mul_u32_u24 v5, 7, v4
    v_sub_u32 v5, v2, v5                         ; c
    v_min_u32 v4, 31, v4
    v_and_b32 v6, 1, v4
    v_lshlrev_b32 v6, 1, v6
    v_bfe_u32 v7, v4, 1, 1
    v_and_b32 v4, 28, v4
    v_or3_b32 v4, v4, v6, v7                     ; lambda
    s_lshl_b32 s{t0}, s{sU0}, 4
    v_lshl_add_u32 v{vWc}, v5, 4, s{t0}
    s_lshl_b32 s{t0}, s{sJ8}, 7
    s_add_u32 s{t0}, s{t0}, {TBL}
    v_lshl_add_u32 v{vWl}, v4, 2, s{t0}
    s_movk_i32 s{sC3456}, 3456
    """)
    e(f"""
    v_and_b32 v2, 127, v0
    v_cmp_le_u32 vcc, 78, v2
    v_mov_b32 v4, 2521
    v_mov_b32 v5, 2622
    v_cndmask_b32 v4, v4, v5, vcc
    v_subrev_u32 v5, 78, v2
    v_cndmask_b32 v2, v2, v5, vcc                ; r0
    v_mul_u32_u24 v4, v4, v2
    v_lshrrev_b32 v4, 16, v4                     ; l0
    v_cndmask_b32 v5, 26, 25, vcc
    v_mul_u32_u24 v5, v5, v4
    v_sub_u32 v2, v2, v5                         ; r
    v_cndmask_b32 v5, 12, 14, vcc                ; nT
    v_cndmask_b32 v6, 0, 36, vcc
    v_mad_u32_u24 v6, v5, v4, v6
    v_cndmask_b32 v7, 0, 3, vcc
    v_add_u32 v4, v4, v7
    v_lshrrev_b32 v7, 7, v0
    v_mad_u32_u24 v4, v7, 5, v4                  ; line
    v_lshl_add_u32 v6, v7, 6, v6
    v_add_u32 v6, v6, v2                         ; a
    v_cmp_ge_u32 vcc, v2, v5
    v_cndmask_b32 v5, v2, v5, vcc
    v_lshl_add_u32 v5, v2, 1, v5
    v_lshl_add_u32 v4, v4, 6, v5                 ; ch0
    v_lshlrev_b32 v7, 2, v4
    v_add_u32 v7, {INV}, v7
    v_and_b32 v2, 6, v0
    v_lshlrev_b32 v2, 4, v2
    v_lshl_add_u32 v2, v0, 7, v2
    v_add_u32 v5, 32768, v2
    ds_write2_b32 v7, v2, v5 offset1:1
    v_and_b32 v2, 6, v6
    v_lshlrev_b32 v2, 4, v2
    v_lshl_add_u32 v2, v6, 7, v2
    v_add_u32 v2, 65536, v2
    v_mov_b32 v5, {INV + 2560}
    v_cndmask_b32 v7, v7, v5, vcc
    ds_write_b32 v7, v2 offset:8
    v_mul_u32_u24 v4, 3456, v4
    v_lshlrev_b32 v5, 2, v0
    v_add_u32 v5, {TBL}, v5
    ds_write2st64_b32 v5, v4, v4 offset1:4
    v_add_u32 v4, 6912, v4
    v_lshlrev_b32 v6, 2, v6
    v_add_u32 v6, {TBL + 2048}, v6
    v_add_u32 v5, 4096, v5
    v_cndmask_b32 v6, v6, v5, vcc
    ds_write2st64_b32 v6, v4, v4 offset1:2
    """)
    e(f"""
    v_lshrrev_b32 v4, 5, v{vLANE}
    v_bfe_u32 v5, v{vLANE}, 4, 1
    v_and_b32 v6, 15, v{vLANE}
    v_lshlrev_b32 v6, 4, v6
    v_lshl_add_u32 v7, v5, 10, v6
    v_lshl_add_u32 v{vG32}, v4, 17, v7
    v_lshl_add_u32 v4, v5, 1, v4
    v_xor_b32 v4, s{sFQ}, v4
    v_lshl_add_u32 v{vG16}, v4, 10, v6
    """)
    e(f"""
    v_subrev_u32 v2, 104, v0
    v_and_b32 v2, 63, v2
    v_bfe_u32 v4, v2, 3, 2
    v_mul_u32_u24 v4, 1088, v4
    v_lshrrev_b32 v5, 5, v2
    v_mul_u32_u24 v5, {IMG1}, v5
    v_and_b32 v2, 7, v2
    v_lshl_add_u32 v2, v2, 2, v4
    v_add3_u32 v2, v2, v5, 0
    v_lshlrev_b32 v4, 2, v0
    v_add_u32 v4, {KSZ}, v4
    v_cmp_gt_u32 vcc, 104, v0
    v_cndmask_b32 v2, v2, v4, vcc
    v_add_u32 v2, {KU0}, v2
    v_mov_b32 v4, 0
    v_and_b32 v5, 7, v0
    v_lshlrev_b32 v5, 2, v5
    v_add_u32 v5, {CB}, v5
    """)
    for k in range(3): e(f"ds_write_b32 v2, v4 offset:{k*CHS}")
    e("ds_write_b32 v5, v4")
    e(f"""
    s_lshr_b64 s[{t4}:{t5}], s[98:99], s{sSH}
    s_lshr_b64 s[{sDK}:{sDK+1}], s[{sDK}:{sDK+1}], s{sSH}
    s_lshl_b32 s{t0}, s{t4}, 16
    s_and_b32 s{t1}, s{t4}, 0xffff0000
    s_lshl_b32 s{t2}, s{t5}, 16
    s_lshl_b32 s{sDK+2}, s{sDK+1}, 16
    s_and_b32 s{sDK+1}, s{sDK}, 0xffff0000
    s_lshl_b32 s{sDK}, s{sDK}, 16
    v_mov_b32 v2, s{t0}
    v_writelane_b32 v2, s{t1}, 1
    v_writelane_b32 v2, s{t2}, 2
    v_mov_b32 v6, {fbits(LOG2E)}
    v_mul_f32 v4, {fbits(LOG2E)}, v2
    v_fma_f32 v5, v2, v6, -v4
    v_fmac_f32 v5, 0x32a57060, v2
    v_exp_f32 v4, v4
    v_mul_f32 v5, {fbits(0.6931471805599453)}, v5
    v_fma_f32 v4, v4, v5, v4
    v_cvt_pk_bf16_f32 v4, v4, v4
    v_and_b32 v4, 0xffff0000, v4
    v_readlane_b32 s{sDT}, v4, 0
    v_readlane_b32 s{sDT+1}, v4, 1
    v_readlane_b32 s{sDT+2}, v4, 2
    s_mov_b32 s{sBUD}, 20000
    """)

vGA = 200
def gather(e, js):
    for j in js:
        e(f"s_add_u32 s{t5}, s{sGB}, {327680*j}")
        e(f"buffer_load_dwordx2 {vr(XG+2*j,2)}, v{vGA}, s[{sX}:{sX+3}], s{t5} offen", "gat")

def ln1(e):
    stamp(e, "pro")
    e(f"s_mov_b32 s{t0}, 0x3f803f80")
    for i in range(10):
        e(f"v_dot2_f32_bf16 v{44+2*(i&1)}, v{8+i}, s{t0}, {'v%d' % (44+2*(i&1)) if i > 1 else 0}")
        e(f"v_dot2_f32_bf16 v{45+2*(i&1)}, v{8+i}, v{8+i}, {'v%d' % (45+2*(i&1)) if i > 1 else 0}")
    stamp(e, "xrow")
    e(f"""
    v_readfirstlane_b32 s{sTAG}, v{vEP}
    v_add_f32 v44, v44, v46
    v_add_f32 v45, v45, v47
    s_mul_i32 s{sTAG}, s{sTAG}, 0x9E3779B1
    s_add_u32 s{sTAG}, s{sTAG}, 0x7F4A7C15
    """)
    for sh in ("quad_perm:[1,0,3,2]", "quad_perm:[2,3,0,1]", "row_half_mirror", "row_mirror"):
        e(f"v_add_f32_dpp v44, v44, v44 {sh} row_mask:0xf bank_mask:0xf")
        e(f"v_add_f32_dpp v45, v45, v45 {sh} row_mask:0xf bank_mask:0xf")
    e(f"""
    v_mov_b32 v46, v44
    v_mov_b32 v47, v45
    v_permlane16_swap_b32 v44, v46
    v_permlane16_swap_b32 v45, v47
    v_add_f32 v44, v44, v46
    v_add_f32 v45, v45, v47
    v_mul_f32 v44, {fbits(1/640)}, v44
    v_mul_f32 v45, {fbits(1/640)}, v45
    v_fma_f32 v45, -v44, v44, v45
    v_max_f32 v45, 0, v45
    v_cvt_pk_bf16_f32 v46, v44, v45
    v_and_b32 v45, 0xffff0000, v46
    v_add_f32 v45, {fbits(1e-5)}, v45
    v_cvt_pk_bf16_f32 v45, v45, v45
    v_and_b32 v45, 0xffff0000, v45
    v_sqrt_f32 v45, v45
    v_mov_b32 v49, s{sTAG}
    v_mov_b32 v51, s{sTAG}
    v_cvt_pk_bf16_f32 v48, v44, v45
    s_lshl_b32 s{t1}, s2, 7
    s_lshl_b32 s{t2}, s{sW}, 4
    v_readlane_b32 s{t0}, v48, 32
    s_add_u32 s{t1}, s{t1}, s{t2}
    s_add_u32 s{t1}, s{t1}, {WS_ST}
    v_mov_b32 v50, s{t0}
    v_mov_b32 v2, 0
    s_mov_b64 exec, 1
    """)
    e.wait("hclr")
    e(f"buffer_store_dwordx4 v[48:51], v2, s[{sWS}:{sWS+3}], s{t1} offen sc1")
    e("s_mov_b64 exec, -1")
    stamp(e, "pub")

def clears(e):
    for U in range(3):
        for th in range(2):
            e(f"s_add_u32 s{t0}, s{sG2}, {2*U*131072}") if th == 0 else None
            e(f"buffer_store_dwordx4 {vr(vONE,4)}, v{vG32}, s[{sWS}:{sWS+3}], s{t0} offen offset:{2048*th} sc1", "clr")
    e(f"s_add_u32 s{t0}, s{sG2}, {6*131072}")
    e(f"buffer_store_dwordx4 {vr(vONE,4)}, v{vG16}, s[{sWS}:{sWS+3}], s{t0} offen sc1", "clr")

def clear_small(e):
    e(f"""
    s_lshl_b32 s{t0}, s{sM}, 7
    s_add_u32 s{t0}, s{t0}, {WS_CS}
    s_cmp_lt_u32 s{sM}, 108
    s_cselect_b32 s{t1}, s{sODD}, 0
    s_cmp_eq_u32 s{sW}, 0
    s_cselect_b32 s{t1}, s{t1}, 0
    s_cmp_eq_u32 s{t1}, 1
    s_cselect_b32 s{t0}, s{t0}, s{sP}
    v_mov_b32 v2, s{sP}
    v_mov_b32 v4, s{t0}
    v_cmp_gt_u32 vcc, 8, v{vLANE}
    v_cndmask_b32 v2, v4, v2, vcc
    v_and_b32 v4, 7, v{vLANE}
    v_lshl_add_u32 v2, v4, 4, v2
    s_mov_b64 exec, 0xffff
    buffer_store_dwordx4 {vr(vONE,4)}, v2, s[{sWS}:{sWS+3}], 0 offen sc1
    s_mov_b64 exec, -1
    """, "hclr")

def tables(e):
    a = e
    g0 = int(DEV.kw.get("g0", 2)); gather(e, range(g0, g0 + int(DEV.kw.get("g1", 3))))
    e(f"""
    s_and_b32 s{t0}, s{sW}, 1
    s_lshl_b32 s{t0}, s{t0}, 8
    s_mov_b32 m0, s{t0}
    s_cmp_ge_u32 s{sW}, 2
    s_cbranch_scc1 A_pa
    """)
    st0 = e.snap()
    cnt = [0]; g0 = int(DEV.kw.get("g0", 2)); gq = []
    def tick(k, pos):
        for j in sched.get((k, pos), []): gather(e, [j])
    g1 = int(DEV.kw.get("g1", 3))
    rest = list(range(g0 + g1, 8)); sched = {}
    slots = {"0": [(1, 1), (2, 0), (2, 2)], "1": [(1, 0), (1, 2), (2, 1)], "2": [(1, 0), (1, 1), (1, 2), (2, 0)]}[DEV.kw.get("gs", "0")]
    for i, j in enumerate(rest): sched.setdefault(slots[i * len(slots) // len(rest)], []).append(j)
    def wr(src, k, row, neg=False):
        r = 60 + (cnt[0] & 3); cnt[0] += 1
        a(f"v_cvt_pk_bf16_f32 v{r}, v{src}, {'-' if neg else ''}v{src+1}")
        for x in (row if isinstance(row, list) else [row]):
            a(f"ds_write_addtid_b32 v{r} offset:{x * TS}")
    def pre(k, p):
        a(f"""
        v_mul_f32 v{p}, s{sDT+k}, v{p}
        v_mul_f32 v{p+1}, s{sDT+k}, v{p+1}
        v_mul_f32 v{p}, {fbits(LOG2E)}, v{p}
        v_mul_f32 v{p+1}, 0.15915494, v{p+1}
        """)
    e(f"s_cmp_eq_u32 s{sODD}, 1\ns_cbranch_scc1 A_b1")
    stp = e.snap()
    for k in range(3):
        p = PB + 8 * k
        if k == 1: e("A_b1:"); e.join(stp)
        if k: a(f"s_add_u32 m0, m0, {TCH}")
        if DEV.kw.get("tst"): e.waitregs(range(p, p + 6)); stampc(e, f"c:t{k}")
        pre(k, p)
        Z8 = 44
        c = [[46, 48, 50, 52], [64, 66, 68, 70]]
        tick(k, 0)
        zbases(a, [(Z8, 8), (c[0][1], 64)], p, p + 1, 56)
        a(f"v_mov_b32 v58, 0x00003f80")
        a(f"ds_write_addtid_b32 v58 offset:{32*TS}")
        cmuls(a, [(c[0][2], c[0][1], c[0][1]), (c[0][0], Z8, Z8)])
        wr(Z8, k, 33); wr(c[0][1], k, 40)
        cmuls(a, [(c[0][3], c[0][2], c[0][1])])
        wr(c[0][0], k, 34); wr(c[0][2], k, 48); wr(c[0][3], k, 56)
        for s in range(1, 8):
            src, dst = c[(s + 1) & 1], c[s & 1]
            lst = [(dst[q], src[q], Z8) for q in range(4) if q or s <= 5]
            cmuls(a, lst)
            if s in (2, 5): tick(k, 1 + (s > 2))
            for q in range(4):
                if q: wr(dst[q], k, 32 + 8 * q + s)
                elif s <= 5: wr(dst[q], k, 32 + s + 2)
    e("s_branch A_mm")
    stB = e.snap()
    e.restore(st0)
    e(f"A_pa:\ns_cmp_eq_u32 s{sODD}, 1\ns_cbranch_scc1 A_a1")
    stp = e.snap()
    for k in range(3):
        p = PB + 8 * k
        if k == 1: e("A_a1:"); e.join(stp)
        if k: a(f"s_add_u32 m0, m0, {TCH}")
        if DEV.kw.get("tst"): e.waitregs(range(p, p + 6)); stampc(e, f"c:t{k}")
        pre(k, p)
        Z1, Z8, Z256 = 44, 46, 48
        T = [64 + 2 * i for i in range(12)]
        tick(k, 0)
        zbases(a, [(Z1, 1), (Z8, 8), (Z256, 256)], p, p + 1, 56)
        a(f"v_mul_f32 v{p+2}, s{sDT+k}, v{p+2}\nv_mul_f32 v{p+3}, s{sDT+k}, v{p+3}")
        cmuls(a, [(T[0], p + 4, p + 2), (50, Z1, Z1)])
        wr(T[0], k, rho(0, 0), True)
        cmuls(a, [(T[1], T[0], Z1), (T[2], T[0], 50), (52, 50, 50), (T[8], T[0], Z256)])
        wr(T[1], k, rho(1, 0), True); wr(T[2], k, rho(2, 0), True); wr(T[8], k, [rho(0, 1), rho(1, 1)], True)
        cmuls(a, [(T[3], T[1], 50), (T[4], T[0], 52), (T[5], T[1], 52), (T[6], T[2], 52), (T[9], T[2], Z256), (T[10], T[8], Z8)])
        tick(k, 1)
        for i in (3, 4, 5, 6): wr(T[i], k, rho(i, 0), True)
        wr(T[9], k, rho(2, 1), True); wr(T[10], k, rho(7, 1), True)
        cmuls(a, [(T[7], T[3], 52), (T[0], T[4], Z256), (T[1], T[6], Z256), (T[2], T[8], Z256), (T[5], T[10], Z256)])
        wr(T[7], k, rho(7, 0), True); wr(T[0], k, [rho(3, 1), rho(4, 1), rho(5, 1)], True); wr(T[1], k, rho(6, 1), True)
        wr(T[2], k, rho(8, 0), True); wr(T[5], k, rho(10, 0), True)
        cmuls(a, [(T[3], T[0], Z256), (T[8], T[2], Z256), (T[10], T[5], Z256)])
        tick(k, 2)
        wr(T[3], k, rho(9, 0), True); wr(T[8], k, rho(8, 1), True); wr(T[10], k, rho(10, 1), True)
        cmuls(a, [(T[0], T[3], Z256), (T[2], T[8], Z256), (T[5], T[10], Z256)])
        wr(T[0], k, rho(9, 1), True); wr(T[2], k, rho(11, 0), True); wr(T[5], k, rho(12, 0), True)
        x, y, x2, y2 = T[2], T[5], T[8], T[10]
        for (i, h) in ((11, 1), (13, 0), (13, 1)):
            cmuls(a, [(x2, x, Z256), (y2, y, Z256)])
            wr(x2, k, rho(i, h), True); wr(y2, k, rho(i + 1, h), True)
            x, y, x2, y2 = x2, y2, x, y
    e("A_mm:"); e.join(stB)
    if DEV.kw.get("tst"): stampc(e, f"c:t3")

def poll_issue(e):
    for j in range(8):
        e(f"s_mov_b32 s{t5}, {WS_ST + 4096*j}\nbuffer_load_dwordx2 {vr(SP+2*j,2)}, v{vSPA}, s[{sWS}:{sWS+3}], s{t5} offen sc1")

def kmm(e):
    e(f"""
    v_and_b32 v4, 31, v{vLANE}
    v_lshrrev_b32 v5, 5, v{vLANE}
    v_mul_u32_u24 v6, {TS}, v4
    v_lshl_add_u32 v6, v5, 4, v6
    s_mul_i32 s{t0}, s{sW}, {TCH}
    v_add_u32 v6, s{t0}, v6
    s_mul_i32 s{t0}, s{sW}, {CHS}
    s_add_u32 s{t0}, s{t0}, {KU0}
    v_lshl_add_u32 v7, v{vLANE}, 2, s{t0}
    v_lshrrev_b32 v4, 3, v0
    v_and_b32 v5, 7, v0
    v_lshlrev_b32 v5, 3, v5
    v_lshl_add_u32 v{vSPA}, v4, 7, v5
    """)
    e.barrier()
    stamp(e, "tab")
    pm = DEV.kw.get("pm", "0")
    if pm == "0": poll_issue(e)
    e(f"""
    s_cmp_eq_u32 s{sW}, 3
    s_cbranch_scc1 A_wd
    s_cmp_lt_u32 s{sW}, s{sODD}
    s_cbranch_scc1 A_kd
    """)
    st = e.snap()
    D = 64; FA = 8; FB = 24
    def rd(s):
        e(f"ds_read_b128 {vr(FA+4*(s&3),4)}, v6 offset:{32*s}")
        e(f"ds_read_b128 {vr(FB+4*(s&3),4)}, v6 offset:{32*TS+32*s}")
    for s in range(3): rd(s)
    e(f"""
    s_cmp_eq_u32 s{sW}, 1
    s_cselect_b32 s{t0}, s{sDK+1}, s{sDK+2}
    s_cmp_eq_u32 s{sW}, 0
    s_cselect_b32 s{t0}, s{sDK}, s{t0}
    v_mov_b32 v4, 0
    v_writelane_b32 v4, s{t0}, 0
    """)
    for s in range(16):
        if s + 3 < 16: rd(s + 3)
        e(f"v_mfma_f32_32x32x16_bf16 {vr(D,16)}, {vr(FA+4*(s&3),4)}, {vr(FB+4*(s&3),4)}, {vr(D,16) if s else 0}")
    if pm == "1": poll_issue(e)
    e(f"v_and_b32 v5, 1, v{vLANE}\nv_cmp_eq_u32 vcc, 0, v5")
    e(f"v_add_f32 v{D}, v{D}, v4")
    def st2(r, sig, reg):
        e(f"ds_write_b32 v7, v{r} offset:{sig*1088 + 256*reg + 24}")
        e(f"ds_write_b32 v7, v{r} offset:{IMG1 + sig*1088 + 256*reg + 32}")
    for sg in range(4): e(f"v_cvt_pk_bf16_f32 v{8+sg}, v{D+sg}, v{D+4+sg}")
    e(f"""
    v_cvt_pk_bf16_f32 v12, v{D+8}, v{D+9}
    v_cvt_pk_bf16_f32 v13, v{D+8}, v{D+10}
    v_cvt_pk_bf16_f32 v14, v{D+9}, v{D+10}
    v_cndmask_b32 v20, v{D+12}, v{D+11}, vcc
    v_cndmask_b32 v21, v{D+14}, v{D+13}, vcc
    v_cvt_pk_bf16_f32 v15, v{D+11}, v20
    v_cvt_pk_bf16_f32 v16, v{D+11}, v{D+12}
    v_cvt_pk_bf16_f32 v17, v{D+13}, v21
    v_cvt_pk_bf16_f32 v18, v{D+13}, v{D+14}
    """)
    for sg in range(4): st2(8 + sg, sg, 0)
    for sg in range(4): st2((12, 12, 13, 14)[sg], sg, 1)
    for sg in range(4): st2((15, 16, 16, 16)[sg], sg, 2)
    for sg in range(4): st2((17, 18, 18, 18)[sg], sg, 3)
    if pm == "1":
        e("s_branch A_ke"); st2_ = e.snap(); e.restore(st)
        e("A_kd:"); poll_issue(e); e("A_ke:"); e.join(st2_)
    else:
        e("s_branch A_kd"); st1 = e.snap(); e.restore(st)
        e("A_wd:\ns_cmp_ge_u32 s2, 224\ns_cbranch_scc1 A_kd")
        wd_dma(e)
        e("A_kd:"); e.join(st, st1)
    stamp(e, "kd")

def wtable(e):
    e(f"s_lshr_b32 s{t0}, s{sJ8}, 1\ns_sub_u32 s{t0}, s{t0}, s{sJ8}\ns_lshl_b32 s{t0}, s{t0}, 7\nv_add_u32 v2, s{t0}, v{vWl}")
    for c in range(8): e(f"ds_read_b32 v{vW+c}, v{vWl} offset:{128*c}")
    for c in range(4): e(f"ds_read_b32 v{vW+8+c}, v2 offset:{2048+128*c}")
    e(f"""
    s_mul_i32 s{t0}, s{sJ8}, 320
    s_add_u32 s{t0}, s{t0}, {INV}
    v_and_b32 v2, 15, v{vLANE}
    v_lshl_add_u32 v2, v2, 2, s{t0}
    """)
    for c in range(5): e(f"ds_read_b32 v{8+c}, v2 offset:{64*c}")
    e(f"""
    s_lshr_b32 s{t0}, s{sW}, 1
    s_lshl_b32 s{t0}, s{t0}, 6
    v_and_b32 v2, 48, v{vLANE}
    v_or_b32 v2, s{t0}, v2
    """)
    for c in range(12): e(f"v_add_u32 v{vW+c}, v{vW+c}, v{vWc}")
    for c in range(5): e(f"v_xor_b32 v{8+c}, v{8+c}, v2")
    for c in range(5): e(f"v_accvgpr_write_b32 a{aRES+c}, v{8+c}")

def wd_dma(e):
    e(f"""
    s_lshr_b32 s{t0}, s2, 2                      ; gu
    s_mul_i32 s{t1}, s{t0}, 37
    s_lshr_b32 s{t1}, s{t1}, 8                   ; g
    s_mul_i32 s{t2}, s{t1}, 7
    s_sub_u32 s{t0}, s{t0}, s{t2}                ; u
    s_mul_i32 s{t1}, s{t1}, 216
    s_lshr_b32 s{t2}, s{t0}, 1
    s_lshl_b32 s{t2}, s{t2}, 4
    s_add_u32 s{t1}, s{t1}, s{t2}
    s_and_b32 s{t2}, s{t0}, 1
    s_lshl_b32 s{t2}, s{t2}, 2
    s_add_u32 s{t1}, s{t1}, s{t2}
    s_mul_i32 s{t1}, s{t1}, 1280
    s_and_b32 s{t2}, s2, 3
    s_mul_i32 s{t2}, s{t2}, 320
    s_add_u32 s{t1}, s{t1}, s{t2}
    s_cmp_eq_u32 s{t0}, 6
    s_cselect_b32 s{t0}, 2, 3
    v_lshrrev_b32 v8, 5, v{vLANE}
    v_bfe_u32 v9, v{vLANE}, 3, 1
    v_lshl_add_u32 v8, v8, 1, v9                 ; q
    v_mul_u32_u24 v8, 27, v8
    v_lshrrev_b32 v8, 2, v8
    v_bfe_u32 v9, v{vLANE}, 4, 1                 ; i
    v_lshlrev_b32 v9, s{t0}, v9
    v_lshl_add_u32 v8, v8, 3, v9
    v_bfe_u32 v9, v{vLANE}, 1, 2
    v_add_u32 v8, v8, v9
    v_mul_u32_u24 v8, 1280, v8
    v_and_b32 v9, 1, v{vLANE}
    v_lshl_add_u32 v8, v9, 4, v8
    s_mov_b32 m0, {WT}
    """)
    for c in range(10):
        e(f"buffer_load_dwordx4 v8, s[{sWD}:{sWD+3}], s{t1} offen lds", "wdd")
        if c < 9: e(f"s_add_u32 m0, m0, 1024\ns_add_u32 s{t1}, s{t1}, 32")

def wd_store(e):
    e(f"""
    s_cmp_lg_u32 s{sW}, 3
    s_cbranch_scc1 A_nwd
    s_cmp_ge_u32 s2, 224
    s_cbranch_scc1 A_nwd
    """)
    st = e.snap()
    e(f"""
    v_lshrrev_b32 v2, 5, v{vLANE}
    v_and_b32 v3, 31, v{vLANE}
    v_lshlrev_b32 v3, 3, v3
    v_lshl_add_u32 v2, v2, 9, v3
    v_add_u32 v2, {WT}, v2
    s_and_b32 s{t0}, s2, 3
    s_mul_i32 s{t0}, s{t0}, 112
    s_lshr_b32 s{t1}, s2, 2
    s_add_u32 s{t0}, s{t0}, s{t1}
    s_mul_i32 s{t0}, s{t0}, 5120
    s_add_u32 s{t0}, s{t0}, {WS_WD}
    """)
    e.wait("wdd")
    for c in range(10):
        for i in range(2): e(f"ds_read_b64_tr_b16 {vr(8+4*c+2*i,2)}, v2 offset:{1024*c + 256*i}")
    for c in range(10):
        if c % 5 == 4: e(f"s_add_u32 s{t0}, s{t0}, 4096")
        e(f"buffer_store_dwordx4 {vr(8+4*c,4)}, v{vL16}, s[{sWS}:{sWS+3}], s{t0} offen offset:{1024*(c % 5 & 3)} sc1", "wds")
        if c == 4: e(f"s_add_u32 s{t0}, s{t0}, {56*5120 - 4096}")
    e("A_nwd:"); e.join(st)

def xunpack(e):
    for j in range(8): e(f"v_lshrrev_b64 {vr(XG+2*j,2)}, s{sSH}, {vr(XG+2*j,2)}")
    for j in range(8):
        e(f"v_lshlrev_b32 v{XF+j}, 16, v{XG+2*j}\nv_and_b32 v{XF+8+j}, 0xffff0000, v{XG+2*j}\nv_lshlrev_b32 v{XF+16+j}, 16, v{XG+2*j+1}")

def upart(e):
    def chk():
        e(f"""
        v_min3_u32 v2, v{SP+1}, v{SP+3}, v{SP+5}
        v_max3_u32 v3, v{SP+1}, v{SP+3}, v{SP+5}
        v_min3_u32 v2, v2, v{SP+7}, v{SP+9}
        v_max3_u32 v3, v3, v{SP+7}, v{SP+9}
        v_min3_u32 v2, v2, v{SP+11}, v{SP+13}
        v_max3_u32 v3, v3, v{SP+11}, v{SP+13}
        v_min_u32 v2, v2, v{SP+15}
        v_max_u32 v3, v3, v{SP+15}
        v_cmp_ne_u32 vcc, s{sTAG}, v2
        v_cmp_ne_u32 s[{t0}:{t1}], s{sTAG}, v3
        s_or_b64 vcc, vcc, s[{t0}:{t1}]
        """)
    stamp(e, "kimg")
    e("A_chk:")
    chk()
    e("s_cbranch_vccnz A_retry\nA_ok:")
    st = e.snap()
    def ool():
        e.restore(st)
        e(f"A_retry:\ns_sub_u32 s{sBUD}, s{sBUD}, 1\ns_cbranch_scc1 A_giveup")
        poll_issue(e); e.waitvm()
        e(f"s_branch A_chk\nA_giveup:\ns_mov_b32 s{sBUD}, 0\ns_branch A_ok")
    e.ool.append(ool)
    stamp(e, "stats")
    ms = [SP + 2 * j for j in range(8)]
    for j in range(8): e(f"v_and_b32 v{RS+j}, 0xffff0000, v{ms[j]}")
    for j in range(8): e(f"v_rcp_f32 v{RS+j}, v{RS+j}")
    for j in range(8): e(f"v_lshlrev_b32 v{MR+j}, 16, v{ms[j]}")
    for j in range(4): e(f"v_pk_mul_f32 {vr(MR+2*j,2)}, {vr(MR+2*j,2)}, {vr(RS+2*j,2)}")
    e(f"v_lshlrev_b32 v2, 1, v0\nv_add_u32 v2, {KU0 + KSZ + UPAD}, v2")
    for k in range(3):
        for j in range(4):
            e(f"v_pk_fma_f32 {vr(UF+8*k+2*j,2)}, {vr(XF+8*k+2*j,2)}, {vr(RS+2*j,2)}, {vr(MR+2*j,2)} neg_lo:[0,0,1] neg_hi:[0,0,1]")
        for j in range(4): e(f"v_cvt_pk_bf16_f32 v{SP+4*k+j}, v{UF+8*k+2*j}, v{UF+8*k+2*j+1}")
        for j in range(4):
            e(f"ds_write_b16 v2, v{SP+4*k+j} offset:{k*CHS + 1024*j}\nds_write_b16_d16_hi v2, v{SP+4*k+j} offset:{k*CHS + 1024*j + 512}")

def epoch(e):
    e(f"""
    s_cmp_lg_u32 s2, 0
    s_cbranch_scc1 A_ne
    """)
    st = e.snap()
    e(f"""
    v_mov_b32 v2, s{sTAG}
    v_mov_b32 v3, 0
    s_mov_b64 exec, 1
    buffer_store_dword v2, v3, s[{sWS}:{sWS+3}], 0 offen sc1
    s_mov_b64 exec, -1
    A_ne:
    """)
    e.join(st)

def wtouch(e):
    e(f"""
    v_mul_u32_u24 v2, 21846, v0
    v_lshrrev_b32 v2, 16, v2                    ; tid/3
    v_mul_u32_u24 v3, 3, v2
    v_sub_u32 v3, v0, v3
    v_lshlrev_b32 v3, 6, v3
    v_min_u32 v3, 108, v3
    v_min_u32 v2, 79, v2
    s_and_b32 s{t0}, s{sN}, 3
    s_mul_i32 s{t0}, s{t0}, {160*3456}
    s_lshl_b32 s{t1}, s{sU0}, 4
    s_add_u32 s{t0}, s{t0}, s{t1}
    s_movk_i32 s{t1}, 3456
    v_mad_u32_u24 v2, v2, s{t1}, v3
    s_add_u32 s{t1}, s{t0}, {80*3456}
    buffer_load_dword v199, v2, s[{sWG}:{sWG+3}], s{t0} offen
    buffer_load_dword v199, v2, s[{sWU}:{sWU+3}], s{t0} offen offset:{UPOFF}
    buffer_load_dword v199, v2, s[{sWG}:{sWG+3}], s{t1} offen
    buffer_load_dword v199, v2, s[{sWU}:{sWU+3}], s{t1} offen offset:{UPOFF}
    """)
```

```python
from em import *
from lay import *
import pa
from pa import stamp, stampc, DEV, XF, vONE

ACC = (8, 40); FA = 72; RT = 104
vA, vB, vYW, vYR, vCR, vCW = 201, 202, (203, 204), (205, 206), 207, 208
BF = (256, 320); CSR = 384
vCS, SEL, CSA = 209, 212, 216
vHP = (vL16, 250, 251)
DPP = "wave_shr:1 row_mask:0xf bank_mask:0xf bound_ctrl:0"
M63, M56 = sMK, sMK + 2
CSS = YB[1]
JUNK = YB[1] + 8256
assert JUNK + 128 + 7*128 + 16 <= YB[2]

def step_map(y):
    if y < 8: return 0, y
    if y == 8: return 1, 0
    if y == 9: return 2, 0
    if y < 17: return 1, y - 9
    return 2, y - 16

def ring_items(y):
    part, c = step_map(y)
    so = sHO + (8 + c if part == 2 else c)
    it = [(f"s_add_u32 m0, s{sRG}, {16384 * (y & 3)}", None)]
    for i in range(4):
        it.append((f"buffer_load_dwordx4 v{vHP[part]}, s[{sWS}:{sWS+3}], s{so} offen offset:{1024*i} sc1 lds", f"r{y}"))
    return it

def w_item(y, slot, which="gu"):
    part, c = step_map(y)
    v = vW + (8 + c if part == 2 else c)
    so = f"s{sC3456}" if part == 1 else "0"
    msk = DEV.kw.get("wm", "0") == "1" or (slot == 11 and "u" in which)
    def f(e):
        if "g" in which: e(f"s_add_u32 m0, s{sWB}, {WSLOT * slot}")
        if msk: e(f"s_mov_b64 exec, s[{M56}:{M56+1}]")
        if "g" in which: e(f"buffer_load_dwordx4 v{v}, s[{sWG}:{sWG+3}], {so} offen lds", f"w{y}")
        if "u" in which: e(f"buffer_load_dwordx4 v{v}, s[{sWU}:{sWU+3}], {so} offen offset:{UPOFF} lds", f"w{y}")
        if msk: e("s_mov_b64 exec, -1")
    return f

def setup(e):
    e(f"""
    v_and_b32 v2, 3, v{vLANE}                  ; sigma / c
    v_bfe_u32 v3, v{vLANE}, 2, 2               ; r
    v_lshrrev_b32 v4, 4, v{vLANE}              ; g
    v_mul_u32_u24 v5, 1088, v2
    v_lshl_add_u32 v5, v3, 3, v5
    v_lshl_add_u32 v5, v4, 4, v5
    v_and_b32 v6, 1, v3
    v_mul_u32_u24 v6, {IMG1 + 8}, v6
    s_mov_b32 s{t0}, {KU0}
    v_add3_u32 v{vA}, v5, v6, s{t0}
    v_sub_u32 v5, v2, v3
    v_lshlrev_b32 v5, 3, v5
    v_lshlrev_b32 v6, 6, v4
    v_sub_u32 v5, v5, v6
    s_lshl_b32 s{t1}, s{sW}, 7
    s_add_u32 s{t0}, s{t1}, {KU0 + KSZ + UPAD - 256 + 96 - 32}
    v_add_u32 v{vB}, s{t0}, v5
    v_and_b32 v5, 1, v3
    v_mul_u32_u24 v5, {YPS}, v5
    v_lshrrev_b32 v6, 3, v{vLANE}
    v_lshl_add_u32 v5, v6, 4, v5
    v_lshl_add_u32 v5, v2, 2, v5
    s_add_u32 s{t0}, s{t1}, {YB[0]}
    v_add_u32 v{vYW[0]}, s{t0}, v5
    v_add_u32 v{vYW[1]}, {YB[1] - YB[0]}, v{vYW[0]}
    v_lshlrev_b32 v5, 4, v0
    v_add_u32 v{vYR[0]}, {YB[0]}, v5
    v_add_u32 v{vYR[1]}, {YB[1]}, v5
    v_and_b32 v5, 7, v0
    v_cmp_eq_u32 vcc, 0, v5
    v_lshlrev_b32 v5, 2, v0
    v_cndmask_b32 v5, 0, v5, vcc
    v_add_u32 v{vCR}, {CB}, v5
    s_lshl_b32 s{t0}, s{sW}, 5
    s_add_u32 s{t0}, s{t0}, {CB + 32 + 256}
    v_lshlrev_b32 v5, 2, v{vLANE}
    v_sub_u32 v6, s{t0}, v5
    v_and_b32 v5, 127, v5
    v_add_u32 v5, {JUNK}, v5
    v_cmp_gt_u32 vcc, 61, v{vLANE}
    v_cndmask_b32 v{vCW}, v6, v5, vcc
    s_mov_b32 s{M56}, -1
    s_mov_b32 s{M56+1}, 0x00ffffff
    s_mul_i32 s{sWB}, s{sW}, 896
    s_lshl_b32 s{sRG}, s{sW}, 12
    s_add_u32 s{sRG}, s{sRG}, {RING}
    v_add_u32 v{vHP[1]}, 32768, v{vL16}
    v_add_u32 v{vHP[2]}, 65536, v{vL16}
    """)
    e(f"""
    s_cmp_lt_u32 s{sM}, 54
    s_cselect_b32 s{sT4}, s{sWG}, s{sWU}
    s_cselect_b32 s{sT4+1}, s{sWG+1}, s{sWU+1}
    s_cselect_b32 s{t0}, 0, {UPOFF - 54*64}
    s_cselect_b32 s{sT4+2}, s{sWG+2}, s{sWU+2}
    s_cmp_lt_u32 s{sM}, 108
    s_cselect_b32 s{sT4+2}, s{sT4+2}, 0
    s_mov_b32 s{sT4+3}, 0x00020000
    s_lshl_b32 s{t1}, s{sM}, 6
    s_add_u32 s{t0}, s{t0}, s{t1}
    s_mul_i32 s{t1}, s{sW}, {16*3456}
    s_add_u32 s{t0}, s{t0}, s{t1}
    v_lshrrev_b32 v5, 2, v{vLANE}
    v_mul_u32_u24 v5, 3456, v5
    v_lshl_add_u32 v5, v2, 4, v5
    v_add_u32 v{vCS}, s{t0}, v5
    v_and_b32 v5, 1, v{vLANE}
    v_lshlrev_b32 v5, 4, v5
    v_mov_b32 v6, 0x3f80
    v_lshlrev_b32 v5, v5, v6
    v_bfe_u32 v6, v{vLANE}, 1, 2
    """)
    for q in range(4):
        e(f"v_cmp_eq_u32 vcc, {q}, v6\nv_cndmask_b32 v{SEL+q}, 0, v5, vcc")

def rdA(k, eps): return f"ds_read_b128 {vr(FA + 4*(eps & 7), 4)}, v{vA} offset:{k*CHS + 64*eps}"
def rdB(k, bs, b, i): return f"ds_read_b64_tr_b16 {R(BF[bs] + 4*(b+1) + 2*i, 2)}, v{vB} offset:{k*CHS + 256*(b+1) + 32*(1-i)}"
BORD = list(range(0, 15, 2)) + list(range(-1, 14, 2))
def epi(k, A, al):
    a = A + 4 * al
    return [f"v_add_f32 v{a}, v{a}, v{XF + 8*k + al}",
            f"v_add_f32_dpp v{a+2}, v{a+3}, v{a+2} {DPP}",
            f"v_add_f32_dpp v{a+1}, v{a+2}, v{a+1} {DPP}",
            f"v_add_f32_dpp v{a}, v{a+1}, v{a} {DPP}",
            f"ds_write_b32 v{vYW[min(k,1)]}, v{a} offset:{(YB[2]-YB[1] if k == 2 else 0) + 512*al}",
            f"v_mov_b32_dpp v{a+1}, v{a+2} row_shl:1 row_mask:0xf bank_mask:0xf",
            f"v_mov_b32_dpp v{a+1}, v{a+3} row_shl:2 row_mask:0xf bank_mask:0xf",
            f"ds_write_b32 v{vCW}, v{a+1} offset:{128*al + 16*(k & 1)}"]
def reader(k):
    o = YB[2] - YB[1] if k == 2 else 0
    rd = [f"ds_read_b128 {vr(RT,4)}, v{vYR[min(k,1)]} offset:{o}",
          f"ds_read_b128 {vr(RT+8,4)}, v{vCR} offset:{16*(k & 1)}",
          f"ds_read_b128 {vr(RT+4,4)}, v{vYR[min(k,1)]} offset:{o + YPS}"]
    va = [f"v_add_f32 v{RT+i}, v{RT+i}, v{RT+9+i}" for i in range(3)]
    va += [f"v_cvt_pk_bf16_f32 v{RT+12+i}, v{RT+2*i}, v{RT+2*i+1}" for i in (0, 1, 2, 3)]
    st = f"buffer_store_dwordx4 {vr(RT+12,4)}, v{vH2 if k == 2 else vH01}, s[{sWS}:{sWS+3}], s{sHS+k} offen sc1"
    return rd, va, st

def clr_items():
    it = []
    for U in range(4):
        def f(e, U=U):
            e(f"s_add_u32 s{t0}, s{sG2}, {2*U*131072}")
            e(f"buffer_store_dwordx4 {vr(vONE,4)}, v{vG32 if U < 3 else vG16}, s[{sWS}:{sWS+3}], s{t0} offen sc1", "clr")
        it.append((f, 3))
        if U < 3: it.append((f"buffer_store_dwordx4 {vr(vONE,4)}, v{vG32}, s[{sWS}:{sWS+3}], s{t0} offen offset:2048 sc1", 2))
    return it

def path(e, ks, name):
    kw = DEV.kw
    S = Sched(e); nk = len(ks); isD = nk == 2
    first = {}; last = {}; alast = {}
    for ci, k in enumerate(ks):
        A = ACC[ci & 1]
        for eps in range(16):
            for al in range(eps // 2, 8):
                b = 2 * al - eps
                g = S.mfma(f"v_mfma_f32_16x16x32_bf16 {vr(A+4*al,4)}, {vr(FA+4*(eps&7),4)}, {R(BF[ci&1]+4*(b+1),4)}, {vr(A+4*al,4) if eps else 0}")
                first.setdefault((ci, eps), g); last[(ci, eps)] = g; alast[(ci, al)] = g
    N = len(S.m)
    k0 = ks[0]
    e(rdA(k0, 0))
    for j, b in enumerate(BORD):
        e(rdB(k0, 0, b, 0)); e(rdB(k0, 0, b, 1))
        if j == 3: e(rdA(k0, 1))
        if j == int(kw.get("bpre", 5)): break
    pre_rest = [rdB(k0, 0, b, i) for b in BORD[j+1:] for i in (0, 1)]
    g = 0
    for jj, it in enumerate(pre_rest): S.put(it, jj // 2, force=True)
    vm = [(f, c, "clr") for f, c in clr_items()] if kw.get("clr", "1") == "1" else []
    if isD:
        for j in range(10):
            def f(e, j=j):
                e(f"s_mov_b32 s{t1}, {64*3456*j}")
                e(f"buffer_load_dwordx4 {R(CSR+4*j,4)}, v{vCS}, s[{sT4}:{sT4+3}], s{t1} offen", "cs")
            vm.append((f, 3, None))
    wv = [(w_item(y, y), 6, None) for y in range(int(kw.get("nw", 12)))]
    if kw.get("wsp", "1") == "1": wv = [(w_item(y, y, q), 3, None) for y in range(int(kw.get("nw", 12))) for q in "gu"]
    if kw.get("nocs"): vm = vm[:7] if kw.get("clr", "1") == "1" else []
    vm = wv[:4] + vm + wv[4:] if kw.get("wfirst", "0") == "1" else vm + wv
    lo = int(kw.get("vlo", 10)); hi = N - int(kw.get("vhiD" if isD else "vhiT", 12 if isD else 40))
    tot = max(1, sum(c for _, c, _ in vm)); acc = 0; g = lo
    for f, c, tg in vm:
        g = S.put(f, lo + (hi - lo) * acc // tot, cost=c, cls="vm", tag=tg, force=True); acc += c
    gvm = g
    nearly = 0 if isD else int(kw.get("re", 2))
    g = max(gvm + 1, N - int(kw.get("rlo", 34))); gring = g
    for y in range(nearly):
        for it, tg in ring_items(y):
            S.put(it, g, force=True, tag=tg)
            if tg: g += int(kw.get("rstep", 3))
    for ci, k in enumerate(ks):
        for eps in range(16):
            if ci == 0 and eps < 2: continue
            if eps >= 8: free = last[(ci, eps - 8)]
            elif ci: free = last[(ci - 1, eps + 8)]
            else: free = -1
            f = first[(ci, eps)]
            S.put(rdA(k, eps), max(free, f - 16, len(pre_rest) // 2 if ci == 0 else 0), max(f - 7, free))
    tags_last = ["clr"] + [f"w{y}" for y in range(12)]
    for ci, k in enumerate(ks):
        A = ACC[ci & 1]; lastch = ci == nk - 1
        ends = []
        for al in range(8):
            if lastch and al >= 6: continue
            it = epi(k, A, al); g0 = alast[(ci, al)] + 3
            g = S.put(it[0], g0); g = S.put(it[1], g0); g = S.put(it[2], g + 2); g3 = S.put(it[3], g + 2); g4 = S.put(it[4], g3 + 1, tag="yw")
            g = S.put(it[5], g3); g = S.put(it[6], g + 2); g = S.put(it[7], g + 1, tag="yw")
            ends.append(max(g, g4))
        if lastch: continue
        g = max(ends)
        def bar(e, k=k):
            e.wait("yw", "wds"); e("s_barrier")
            if kw.get("ybs"): stamp(e, f"yb{k}")
        bar.nm = "B"
        g = S.put(bar, g + 3, cost=2)
        if ci == nk - 2: gbar = g
        rd, va, st = reader(k)
        g = S.chain(rd, g + 1, step=1)
        g = S.chain(va, g + 6)
        S.put(st, g + 1, tag="hst")
    for ci in range(nk - 1):
        lo = first[(ci, 0)] + (len(pre_rest) // 2 + 2 if ci == 0 else 0); hi = first[(ci + 1, 0)] - 8
        its = [rdB(ks[ci + 1], (ci + 1) & 1, b, i) for b in BORD for i in (0, 1)]
        for j, it in enumerate(its): S.put(it, lo + (hi - lo) * j // len(its), hi)
    assert nearly == 0 or gring > gbar, (gring, gbar)
    x = kw.get("x", "")
    def keep(it):
        if not isinstance(it, str): return "c" not in x and getattr(it, "nm", "?") not in x
        if "b64_tr" in it: return "b" not in x
        if "ds_read_b128" in it: return "a" not in x
        if "dpp" in it: return "d" not in x
        if it.startswith("v_"): return "v" not in x
        if it.startswith("ds_write"): return "w" not in x
        return True
    S.g = [[(it, tg) for it, tg in g if keep(it)] for g in S.g]
    if "V" in x: S.m = [(re.sub(r"a\[(\d+):(\d+)\]", lambda m: f"v[{128+int(m.group(1))%64}:{128+int(m.group(2))%64}]", t), p) for t, p in S.m]
    S.report(name); S.emit()
    k = ks[-1]; A = ACC[(nk - 1) & 1]
    i6, i7 = epi(k, A, 6), epi(k, A, 7)
    for x in (i6[0], i6[1], None, i6[2], None, i6[3], i7[0], i7[1], i6[5], i6[4], i7[2], i6[6], None, i7[3], i6[7], i7[5], i7[4], None, i7[6], i7[7]):
        if x: e(x)
    stampc(e, "c:bmm"); stamp(e, "bmm")
    e.barrier(*tags_last)
    stamp(e, "yb2")
    rd, va, st = reader(k)
    for x in rd: e(x)
    if not isD and not kw.get("rep"):
        for x, tg in ring_items(nearly): e(x, tg)
        nearly += 1
    for x in va: e(x)
    e(st, "hst")
    stamp(e, "hst")
    if isD:
        for j in range(10):
            e(f"v_mfma_f32_16x16x32_bf16 {vr(CSA,4)}, {vr(SEL,4)}, {R(CSR+4*j,4)}, {vr(CSA,4) if j else 0}")
        e(f"""
        v_and_b32 v2, 3, v{vLANE}
        v_lshlrev_b32 v2, 5, v2
        v_and_b32 v3, 16, v{vLANE}
        s_lshl_b32 s{t0}, s{sW}, 7
        s_add_u32 s{t0}, s{t0}, {CSS}
        v_add3_u32 v2, v2, v3, s{t0}
        v_add_u32 v3, {CSS}, v{vL16}
        """)
        for sh in (4, 8):
            for r in range(4): e(f"v_add_f32_dpp v{CSA+r}, v{CSA+r}, v{CSA+r} row_ror:{sh} row_mask:0xf bank_mask:0xf")
        e(f"ds_write_b128 v2, {vr(CSA,4)}")
        e.barrier()
        e(f"""
        s_cmp_ge_u32 s{sM}, 108
        s_cselect_b32 s{t0}, 1, s{sW}
        s_cmp_lg_u32 s{t0}, 0
        s_cbranch_scc1 B_ncs
        """)
        st0 = e.snap()
        e("s_mov_b64 exec, 0xff")
        for w in range(4): e(f"ds_read_b128 {vr(8+4*w,4)}, v3 offset:{128*w}")
        e(f"s_lshl_b32 s{t0}, s{sM}, 7\ns_add_u32 s{t0}, s{t0}, {WS_CS}")
        for r in range(4): e(f"v_add_f32 v{8+r}, v{8+r}, v{12+r}\nv_add_f32 v{16+r}, v{16+r}, v{20+r}")
        for r in range(4): e(f"v_add_f32 v{8+r}, v{8+r}, v{16+r}")
        e(f"buffer_store_dwordx4 v[8:11], v{vL16}, s[{sWS}:{sWS+3}], s{t0} offen sc1\ns_mov_b64 exec, -1\nB_ncs:")
        e.join(st0)
        stamp(e, "cs")
    for y in range(nearly, 0 if kw.get("rep") else 4):
        for x, tg in ring_items(y): e(x, tg)

def phaseB(e, stop):
    e.barrier(); stamp(e, "bst"); pa.epoch(e)
    rep = DEV.kw.get("rep")
    if rep: e(f"s_mov_b32 s35, {rep}\nB_rep:"); e.waitvm(); e.barrier(); stamp(e, "rep"); stampc(e, "c:rep")
    e(f"s_cmp_eq_u32 s{sODD}, 1\ns_cbranch_scc1 B_D")
    st = e.snap()
    path(e, [0, 1, 2], "BT")
    e("s_branch B_end")
    stT = e.snap(); e.restore(st)
    e("B_D:")
    path(e, [1, 2], "BD")
    e("B_end:"); e.join(stT)
    stamp(e, "bend")
    if rep: e.waitvm(); e.waitlg(); e("s_sub_u32 s35, s35, 1\ns_cmp_lg_u32 s35, 0\ns_cbranch_scc1 B_rep")
    if stop == "B": e.waitvm()
```

```python
from em import *
from lay import *
import pa, pb
from pa import stamp, stampc, DEV, fbits
from pb import ring_items, w_item, step_map

C1, C2 = -2.302208198, -0.1029432397
def A32(U, th): return 8 + 16 * (2 * U + th)
def A16(j): return 104 + 4 * j
FR = (256, 256 + 60)
def fA(b, U, kk): return FR[b] + 4 * (2 * U + kk)
def fA16(b): return FR[b] + 24
def fB(b, kk, th): return FR[b] + 28 + 4 * (2 * kk + th)
def fB16(b, j): return FR[b] + 44 + 4 * j
vB32, vB16, vA32, vA16, vCK = 220, 224, 228, 230, 232
ONES = 256 + 252
LQ, LS, LQ9, LS9 = 120, 124, 128, 132
CS = 120
PG = 176
CK = 2
sM1, sM2, sM3, sMD = 36, 38, 40, 42
sPB, sCS, sCS2, sEV = 56, 57, 58, 59
TMP = 192

def setup(e):
    e(f"""
    v_bfe_u32 v2, v{vLANE}, 4, 1               ; g1
    v_lshrrev_b32 v3, 5, v{vLANE}              ; h
    v_bfe_u32 v4, v{vLANE}, 2, 1               ; r1
    v_bfe_u32 v5, v{vLANE}, 3, 1               ; r2
    v_and_b32 v6, 3, v{vLANE}                  ; c4
    v_lshl_add_u32 v7, v3, 1, v5               ; 2h + r2
    v_lshl_add_u32 v7, v7, 2, v4               ; 8h + 4r2 + r1
    v_lshlrev_b32 v7, 7, v7
    v_lshl_add_u32 v7, v6, 3, v7
    s_lshl_b32 s{t0}, s{sW}, 12
    s_add_u32 s{t0}, s{t0}, {RING}
    v_add_u32 v7, s{t0}, v7
    v_lshl_add_u32 v{vCK}, v5, 1, v2           ; 2r2 + g1
    v_lshl_add_u32 v{vB32}, v{vCK}, 5, v7
    v_xor_b32 v{vB32+1}, 32, v{vB32}
    v_xor_b32 v{vB32+2}, 64, v{vB32}
    v_xor_b32 v{vB32+3}, 0x60, v{vB32}
    v_xor_b32 v{vCK}, s{sFQ}, v{vCK}
    v_lshl_add_u32 v7, v2, 8, v7
    v_lshl_add_u32 v{vB16}, v{vCK}, 5, v7
    v_xor_b32 v{vB16+1}, 32, v{vB16}
    v_xor_b32 v{vB16+2}, 64, v{vB16}
    v_xor_b32 v{vB16+3}, 0x60, v{vB16}
    v_bfe_u32 v4, v{vLANE}, 2, 2               ; r
    v_lshl_add_u32 v4, v3, 2, v4               ; 4h + r
    v_mul_u32_u24 v4, 224, v4
    v_mul_u32_u24 v5, {UPOFF}, v2
    v_lshl_add_u32 v5, v6, 3, v5
    v_add_u32 v{vA32}, v4, v5
    v_add_u32 v{vA32+1}, {8*WSLOT}, v{vA32}
    v_mul_u32_u24 v5, 112, v2
    v_and_b32 v7, 1, v6
    v_lshl_add_u32 v5, v7, 3, v5
    v_lshrrev_b32 v6, 1, v6
    v_mul_u32_u24 v6, {UPOFF}, v6
    v_add3_u32 v4, v4, v5, v6
    v_add_u32 v{vA16}, 96, v4
    v_add_u32 v{vA16+1}, {8*WSLOT + 96}, v4
    v_bfe_u32 v4, v{vLANE}, 3, 2
    v_lshlrev_b32 v4, 2, v4
    v_lshl_add_u32 v4, v{vLANE}, 4, v4
    v_add_u32 v{vCK}, s{t0}, v4
    v_mov_b32 v4, 0x3f803f80
    v_accvgpr_write_b32 a252, v4
    v_accvgpr_write_b32 a253, v4
    v_accvgpr_write_b32 a254, v4
    v_accvgpr_write_b32 a255, v4
    s_mov_b32 s{sM1}, 0x22222222
    s_mov_b32 s{sM1+1}, 0x22222222
    s_mov_b32 s{sM2}, 0x44444444
    s_mov_b32 s{sM2+1}, 0x44444444
    s_mov_b32 s{sM3}, 0x88888888
    s_mov_b32 s{sM3+1}, 0x88888888
    s_mov_b32 s{sMD}, 0x00f0000f
    s_mov_b32 s{sMD+1}, 0xf0000f00
    s_lshl_b32 s{sPB}, s{sTB}, 12
    s_add_u32 s{sPB}, s{sPB}, {WS_P}
    s_lshl_b32 s{sCS}, s{sU0}, 5
    s_add_u32 s{sCS}, s{sCS}, {WS_CS}
    s_add_u32 s{sCS2}, s{sCS}, 6912
    s_bitcmp0_b32 s{sJ8}, 0
    s_cselect_b32 s{sEV}, 1.0, 0
    """)

def rdA(y):
    b = y & 1; ws = y if y < 12 else y - 12; hi = int(ws >= 8); o = (ws & 7) * WSLOT
    def a32(U, kk): return [f"ds_read_b64_tr_b16 {R(fA(b,U,kk)+2*i,2)}, v{vA32+hi} offset:{o + 112*(16*kk+i) + 32*U}" for i in (0, 1)]
    a16 = [f"ds_read_b64_tr_b16 {R(fA16(b)+2*i,2)}, v{vA16+hi} offset:{o + 112*16*i}" for i in (0, 1)]
    return a32(0, 0) + a32(1, 0) + a16 + a32(2, 0) + a32(0, 1) + a32(1, 1) + a32(2, 1)
def rdB(y):
    b = y & 1; o = 16384 * (y & 3)
    def b32(kk, th): return [f"ds_read_b64_tr_b16 {R(fB(b,kk,th)+2*i,2)}, v{vB32+2*th+i} offset:{o + 2048*kk + 256*i}" for i in (0, 1)]
    def b16(j): return [f"ds_read_b64_tr_b16 {R(fB16(b,j)+2*i,2)}, v{vB16+j} offset:{o + 2048*i}" for i in (0, 1)]
    return b32(0, 0) + b32(0, 1) + b16(0) + b16(1) + b32(1, 0) + b32(1, 1) + b16(2) + b16(3)
def rdCK(y):
    o = 64 * (y & 3)
    return [f"ds_read2st64_b32 v[{CK}:{CK+1}], v{vCK} offset0:{o} offset1:{o+4}",
            f"ds_read2st64_b32 v[{CK+2}:{CK+3}], v{vCK} offset0:{o+8} offset1:{o+12}"]
CKV = [f"v_max3_u32 v{CK}, v{CK}, v{CK+1}, v{CK+2}", f"v_max_u32 v{CK}, v{CK}, v{CK+3}", f"v_cmp_eq_u32 vcc, -1, v{CK}"]

def ring_check(y):
    def f(e):
        e(f"s_cbranch_vccnz C_rt{y}")
        st = e.snap()
        e(f"C_ok{y}:")
        def ool():
            e.restore(st)
            e(f"C_rt{y}:"); e.waitlg()
            e(f"C_rl{y}:\ns_sub_u32 s{sBUD}, s{sBUD}, 1\ns_cbranch_scc1 C_gv{y}")
            for x, tg in ring_items(y): e(x, tg)
            e("s_waitcnt vmcnt(0)")
            for x in rdCK(y) + CKV: e(x)
            e(f"s_cbranch_vccnz C_rl{y}")
            for x in rdB(y): e(x)
            e(f"s_waitcnt lgkmcnt(0)\ns_branch C_ok{y}\nC_gv{y}:\ns_mov_b32 s{sBUD}, 0\ns_branch C_ok{y}")
        e.ool.append(ool)
    return f

def gat_items():
    return [f"buffer_load_dwordx2 {vr(PG+2*j,2)}, v6, s[{sWS}:{sWS+3}], s{sPB} offen offset:{512*j} sc1" for j in range(8)]
def gat_sum():
    it = []
    for a, b in ((0, 1), (2, 3), (4, 5), (6, 7), (0, 2), (4, 6), (0, 4)):
        it += [f"v_add_f32 v{PG+2*a}, v{PG+2*a}, v{PG+2*b}", f"v_add_f32 v{PG+2*a+1}, v{PG+2*a+1}, v{PG+2*b+1}"]
    return it + [f"v_cmp_u_f32 vcc, v{PG}, v{PG+1}"]
def cs_items():
    it = []
    for U in range(3):
        for m in range(2):
            for j in range(2):
                it.append(f"buffer_load_dwordx4 {vr(CS+16*U+8*m+4*j,4)}, v7, s[{sWS}:{sWS+3}], s{sCS2 if m else sCS} offen offset:{64*U+32*j} sc1")
    for m in range(2):
        it.append(f"buffer_load_dwordx4 {vr(CS+48+4*m,4)}, v{TMP}, s[{sWS}:{sWS+3}], s{sCS2 if m else sCS} offen offset:192 sc1")
    return it
def cs_chk():
    t = TMP + 1
    it = [f"v_max3_u32 v{t}, v{CS}, v{CS+4}, v{CS+8}"]
    for i in range(3, 13, 2): it.append(f"v_max3_u32 v{t}, v{t}, v{CS+4*i}, v{CS+4*i+4}")
    return it + [f"v_max_u32 v{t}, v{t}, v{CS+52}", f"v_cmp_eq_u32 vcc, -1, v{t}"]
def retry(name, loads, chk):
    def f(e):
        e(f"s_cbranch_vccnz {name}_rt")
        st = e.snap()
        e(f"{name}_ok:")
        def ool():
            e.restore(st)
            e(f"{name}_rt:\ns_sub_u32 s{sBUD}, s{sBUD}, 1\ns_cbranch_scc1 {name}_gv")
            for x in loads: e(x)
            e("s_waitcnt vmcnt(0)")
            for x in chk: e(x)
            e(f"s_cbranch_vccnz {name}_rt\ns_branch {name}_ok\n{name}_gv:\ns_mov_b32 s{sBUD}, 0\ns_branch {name}_ok")
        e.ool.append(ool)
    return f
def finalize():
    S, Q, F = PG, PG + 1, PG + 4
    return f"""
    v_mul_f32 v{S}, {fbits(1/640)}, v{S}
    v_mul_f32 v{Q}, {fbits(1/640)}, v{Q}
    v_fma_f32 v{Q}, -v{S}, v{S}, v{Q}
    v_max_f32 v{Q}, 0, v{Q}
    v_cvt_pk_bf16_f32 v{PG+2}, v{S}, v{Q}
    v_and_b32 v{Q}, 0xffff0000, v{PG+2}
    v_lshlrev_b32 v{S}, 16, v{PG+2}
    v_add_f32 v{Q}, {fbits(1e-5)}, v{Q}
    v_sub_f32 v{F}, 0, v{S}
    v_cvt_pk_bf16_f32 v{Q}, v{Q}, v{Q}
    v_and_b32 v{Q}, 0xffff0000, v{Q}
    v_sqrt_f32 v{Q}, v{Q}
    v_cvt_pk_bf16_f32 v{Q}, v{Q}, v{Q}
    v_and_b32 v{Q}, 0xffff0000, v{Q}
    v_rcp_f32 v{S}, v{Q}
    v_mul_f32 v{F+1}, v{Q}, v{Q}
    v_mul_f32 v{F+2}, {fbits(C1)}, v{S}
    v_mul_f32 v{PG+2}, v{S}, v{S}
    v_mul_f32 v{S}, {fbits(C2)}, v{S}
    v_mul_f32 v{F+3}, v{S}, v{PG+2}
    """.strip().split("\n")

ORD = [(0,0,0),(0,0,1),(1,0,0),(1,0,1),0,(2,0,0),(2,0,1),1,(0,1,0),(0,1,1),(1,1,0),2,(1,1,1),(2,1,0),(2,1,1),3]
APOS = [0,0,0,1,1,1,2,2,2,3,3,4,5,5]
BPOS = [6,7,8,8,9,9,9,10,10,11,12,12,12,13,13,13]
DPOS = [3,5,8,10]

def gelu(e, G, U, cg, cu, F, n, O, mid=None):
    T = TMP; MM, KK = F, F + 2; P = range(n // 2)
    for p in P: e(f"v_pk_fma_f32 {vr(G+2*p,2)}, {vr(cg+2*p,2)}, {vr(MM,2)}, {vr(G+2*p,2)} op_sel_hi:[1,0,1]")
    for p in P: e(f"v_pk_mul_f32 {vr(T+2*p,2)}, {vr(G+2*p,2)}, {vr(G+2*p,2)}")
    for p in P: e(f"v_pk_fma_f32 {vr(U+2*p,2)}, {vr(cu+2*p,2)}, {vr(MM,2)}, {vr(U+2*p,2)} op_sel_hi:[1,0,1]")
    for p in P: e(f"v_pk_fma_f32 {vr(T+2*p,2)}, {vr(T+2*p,2)}, {vr(KK,2)}, {vr(KK,2)} op_sel:[0,1,0] op_sel_hi:[1,1,0]")
    for p in P: e(f"v_pk_mul_f32 {vr(T+2*p,2)}, {vr(T+2*p,2)}, {vr(G+2*p,2)}")
    if mid: mid(0)
    for i in range(n): e(f"v_exp_f32 v{T+i}, v{T+i}")
    for p in P: e(f"v_pk_mul_f32 {vr(G+2*p,2)}, {vr(G+2*p,2)}, {vr(U+2*p,2)}")
    for p in P: e(f"v_pk_fma_f32 {vr(T+2*p,2)}, {vr(T+2*p,2)}, {vr(MM,2)}, {vr(MM,2)} op_sel:[0,1,1] op_sel_hi:[1,1,1]")
    if mid: mid(1)
    for i in range(n): e(f"v_rcp_f32 v{T+i}, v{T+i}")
    for p in P: e(f"v_pk_mul_f32 {vr(G+2*p,2)}, {vr(G+2*p,2)}, {vr(T+2*p,2)}")
    for p in P: e(f"v_cvt_pk_bf16_f32 v{O+p}, v{G+2*p}, v{G+2*p+1}")

def phaseC(e, stop, extra=None, epi_hook=None):
    kw = DEV.kw
    nw = int(kw.get("nw", 12))
    for x in rdA(0): e(x, "A0")
    e.wait("r0")
    for x in rdCK(0): e(x)
    for x in rdB(0): e(x, "B0")
    for x in CKV: e(x)
    ring_check(0)(e)
    stamp(e, "cst"); stampc(e, "c:cst")
    S = Sched(e); G = []
    for y in range(20):
        b = y & 1; g = []
        for o in ORD:
            if isinstance(o, tuple):
                U, kk, th = o; D = A32(U, th)
                g.append(S.mfma(f"v_mfma_f32_32x32x16_bf16 {vr(D,16)}, {R(fA(b,U,kk),4)}, {R(fB(b,kk,th),4)}, {vr(D,16) if y or kk else 0}"))
            else:
                D = A16(o)
                g.append(S.mfma(f"v_mfma_f32_16x16x32_bf16 {vr(D,4)}, {R(fA16(b),4)}, {R(fB16(b,o),4)}, {vr(D,4) if y else 0}"))
                if o == 0 and y in (0, 8, 9):
                    q, s = (LQ9, LS9) if y == 9 else (LQ, LS)
                    S.mfma(f"v_mfma_f32_16x16x32_bf16 {vr(q,4)}, {R(fB16(b,0),4)}, {R(fB16(b,0),4)}, {vr(q,4) if y == 8 else 0}")
                    S.mfma(f"v_mfma_f32_16x16x32_bf16 {vr(s,4)}, {R(ONES,4)}, {R(fB16(b,0),4)}, {vr(s,4) if y == 8 else 0}")
        G.append(g)
    wl = list(range(nw, 20)); plan = {}
    pre = [w for w in wl if w < 12]
    for i, w in enumerate(pre): plan.setdefault(i * 3 // len(pre), []).append(w)
    for w in range(12, 20): plan.setdefault(w - 9, []).append(w)
    for y in range(20):
        g = G[y]
        if y in (3, 7, 11, 15, 19):
            def bar(e, y=y):
                e.wait(f"A{y}", *[f"w{w}" for w in range(y + 1, y + 5)]); e("s_barrier")
            S.put(bar, g[0], force=True, cost=2)
        if y < 19:
            for x, p in zip(rdA(y + 1), APOS): S.put(x, g[p], force=True, tag=f"A{y+1}")
            S.put(lambda e, y=y: e.wait(f"r{y+1}"), g[6], force=True, cost=1)
            for x in rdCK(y + 1): S.put(x, g[6], force=True, tag=f"B{y+1}")
            for x, p in zip(rdB(y + 1), BPOS): S.put(x, g[p], force=True, tag=f"B{y+1}")
        if y + 4 < 20:
            it = ring_items(y + 4)
            S.put(lambda e, y=y: e.wait(f"B{y}"), g[2], force=True, cost=0)
            S.put(it[0][0], g[2], force=True)
            for (x, tg), p in zip(it[1:], DPOS): S.put(x, g[p], force=True, tag=tg)
        ws = plan.get(y, [])
        wp = [(12, 14)] if len(ws) == 1 else [(11, 12), (13, 14)]
        for w, (p0, p1) in zip(ws, wp):
            sl = w if w < 12 else w - 12
            S.put(w_item(w, sl, "g"), g[p0], force=True, cost=3, cls="vm")
            S.put(w_item(w, sl, "u"), g[p1], force=True, cost=2, cls="vm")
        if y < 19:
            S.put(CKV[0], g[12], force=True); S.put(CKV[1], g[13], force=True); S.put(CKV[2], g[14], force=True)
            S.put(ring_check(y + 1), g[15], force=True)
    g = G[9][8]
    it = [f"v_and_b32 v6, 15, v{vLANE}", "v_lshlrev_b32 v6, 3, v6"]
    it += [f"v_fma_f32 v{LQ+r}, v{LQ9+r}, s{sEV}, v{LQ+r}" for r in range(4)] + [f"v_fma_f32 v{LS}, v{LS9}, s{sEV}, v{LS}"]
    it += [f"v_cndmask_b32 v{LS+1}, v{LQ}, v{LQ+1}, s[{sM1}:{sM1+1}]", f"v_cndmask_b32 v{LS+1}, v{LS+1}, v{LQ+2}, s[{sM2}:{sM2+1}]", f"v_cndmask_b32 v{LS+1}, v{LS+1}, v{LQ+3}, s[{sM3}:{sM3+1}]"]
    g = S.chain(it, g)
    def pst(e): e(f"s_mov_b64 exec, s[{sMD}:{sMD+1}]\nbuffer_store_dwordx2 {vr(LS,2)}, v6, s[{sWS}:{sWS+3}], s{sP} offen sc1\ns_mov_b64 exec, -1", "pst")
    g = S.put(pst, g + 1, cost=4)
    y0 = int(kw.get("ycs", 11))
    g = S.chain([f"v_lshrrev_b32 v7, 5, v{vLANE}", "v_lshlrev_b32 v7, 4, v7", f"v_and_b32 v{TMP}, 16, v{vLANE}"], max(g + 1, G[y0][0]))
    vslots = [G[y][p] for y in range(11, 19) for p in (1, 12, 14)]
    vs = [x for x in vslots if x > g]
    for x, p in zip(cs_items(), vs): S.put(x, p, force=True, tag="cs"); g = p
    gcs = g
    yg = int(kw.get("yg", 16))
    S.put(f"v_lshlrev_b32 v6, 3, v{vLANE}", G[yg - 1][9])
    gp = [G[yg][p] for p in (0, 1, 2, 3, 5, 8, 10, 12)]
    for x, p in zip(gat_items(), gp): S.put(x, p, force=True, tag="pg")
    g = S.chain(cs_chk(), max(gcs + 12, G[yg + 1][0]))
    g = S.put(retry("C_cs", cs_items(), cs_chk()), g + 1, G[yg + 1][13])
    assert g < G[yg + 1][14]
    g = S.chain(gat_sum(), G[18][0], G[18][13])
    g = S.put(retry("C_pg", gat_items(), gat_sum()), g + 1)
    assert g < G[18][14], (g, G[18])
    fin = finalize()
    g = S.chain(fin[:12], g + 1)
    g = S.chain(fin[12:], g + 1)
    ad = [f"s_lshl_b32 s{t0}, s{sW}, 10", f"s_add_u32 s{t0}, s{t0}, {FAC}", f"v_add_u32 v6, s{t0}, v{vL16}",
          f"v_and_b32 v7, 0x1f0, v{vL16}", f"v_add_u32 v7, s{t0}, v7",
          f"v_lshrrev_b32 v{TMP}, 5, v{vLANE}", f"v_xor_b32 v{TMP}, s{sFQ}, v{TMP}", f"v_and_b32 v{TMP+1}, 0xf0, v{vL16}",
          f"v_lshl_add_u32 v{TMP}, v{TMP}, 8, v{TMP+1}", f"v_xor_b32 v{TMP+1}, 0x200, v{TMP}",
          f"v_add_u32 v{TMP}, s{t0}, v{TMP}", f"v_add_u32 v{TMP+1}, s{t0}, v{TMP+1}"]
    ga = S.chain(ad, G[19][0])
    g = S.put(f"ds_write_b128 v6, {vr(PG+4,4)}", max(g, ga) + 1)
    g = S.chain([f"ds_read_b128 {vr(PG,4)}, v7", f"ds_read_b128 {vr(PG+8,4)}, v{TMP}", f"ds_read_b128 {vr(PG+12,4)}, v{TMP+1}", f"ds_read_b128 {vr(PG+4,4)}, v7 offset:512"], g)
    if extra: extra(S, G)
    S.report("C"); S.emit()
    stampc(e, "c:cmm"); stamp(e, "cmm")
    blk = 0
    for U in range(3):
        for th in range(2):
            D = A32(U, th); O = TMP + 8 + 4 * (blk & 1)
            gelu(e, D, D + 8, CS + 16 * U, CS + 16 * U + 8, PG + 4 * th, 8, O, (lambda m, blk=blk: epi_hook(e, blk, m)) if epi_hook else None)
            if th == 0: e(f"s_add_u32 s{t0}, s{sG2}, {2*U*131072}")
            e(f"buffer_store_dwordx4 {vr(O,4)}, v{vG32}, s[{sWS}:{sWS+3}], s{t0} offen offset:{2048*th} sc1", "hs")
            blk += 1
    for P in range(2):
        for r in range(4): e(f"v_permlane32_swap_b32 v{A16(2*P)+r}, v{A16(2*P+1)+r}")
    O = TMP + 8
    e(f"s_cmp_eq_u32 s{sQ}, 0\ns_cselect_b32 s{t1}, 0, -1\ns_add_u32 s{t0}, s{sG2}, {6*131072}")
    for P in range(2):
        gelu(e, A16(2*P), A16(2*P+1), CS + 48, CS + 52, PG + 8 + 4 * P, 4, O + 2 * P, (lambda m, P=P: epi_hook(e, 6 + P, m)) if epi_hook else None)
    e(f"v_permlane16_swap_b32 v{O}, v{O+2}\nv_permlane16_swap_b32 v{O+1}, v{O+3}")
    for r in range(4): e(f"v_and_b32 v{O+r}, s{t1}, v{O+r}")
    e(f"buffer_store_dwordx4 {vr(O,4)}, v{vG16}, s[{sWS}:{sWS+3}], s{t0} offen sc1", "hs")
    stampc(e, "c:epi"); stamp(e, "epi")
    if stop == "C": e.waitvm()
```

```python
from em import *
from lay import *
import pa, pc
from pa import stamp, stampc, DEV

NB = 6
HB = [8, 24, 40, 56, 152, 168]
ACC = 72
RES = 184
SELA = 256 + 252
vHL = 2
sWB2, sH0, sHT = 60, 61, 44
sRS = 62
RED = 0
def acc(j, cf): return ACC + 20 * j + 4 * cf
def su(s): return 7 * (s & 1) + (s >> 1)
WREG = [256 + 120 + 4 * i for i in range(31)] + [208, 212, 216, 236, 240, 244] + [256 + 4 * i for i in range(30)] + [220, 224, 228]
NC = 37
def wd_load(n):
    s, cf = divmod(n, 5)
    o = su(s) * 5120 + 1024 * cf
    def f(e):
        e(f"s_add_u32 s{t5}, s{sWB2}, {o}")
        e(f"buffer_load_dwordx4 {R(WREG[n],4)}, v{vL16}, s[{sWS}:{sWS+3}], s{t5} offen sc1", "wdc" if n < NC else "wde")
    return f
def h_loads(s):
    return [f"buffer_load_dwordx4 {vr(HB[s % NB]+4*j,4)}, v{vHL+j}, s[{sWS}:{sWS+3}], s{sHT+s} offen sc1" for j in range(4)]
def h_off(s): return f"s_add_u32 s{sHT+s}, s{sH0}, {su(s)*131072}"
def h_chk(s):
    b = HB[s % NB]
    return [f"v_max3_u32 v6, v{b}, v{b+4}, v{b+8}", f"v_max_u32 v6, v6, v{b+12}", "v_cmp_eq_u32 vcc, -1, v6"]

def c_extra(S, G):
    kw = DEV.kw
    g = S.chain([f"s_mul_i32 s{sWB2}, s{sJ8}, 56", f"s_mul_i32 s{t4}, s{sW}, 14", f"s_add_u32 s{sWB2}, s{sWB2}, s{t4}",
                 f"s_mul_i32 s{sWB2}, s{sWB2}, 5120", f"s_add_u32 s{sWB2}, s{sWB2}, {WS_WD}",
                 f"s_lshl_b32 s{sRS}, s{sRB}, 2", f"s_add_u32 s{sRS}, s{sRS}, s{sFQ}",
                 f"s_lshl_b32 s{sH0}, s{sRS}, 12", f"s_mul_i32 s{t4}, s{sW}, {14*131072}", f"s_add_u32 s{sH0}, s{sH0}, s{t4}", f"s_add_u32 s{sH0}, s{sH0}, {WS_H2}",
                 f"s_mul_i32 s{sRS}, s{sRS}, 81920", f"s_add_u32 s{sRS}, s{sRS}, {WS_H1}"], G[1][0], G[5][15])
    pos = [(y, p) for y in range(7, 11) for p in (1, 9)] + [(y, p) for y in range(11, 16) for p in (0, 9)]
    pos += [(y, p) for y in (17, 18) for p in (1, 3, 5, 8, 9, 10, 12, 14)] + [(19, p) for p in (1, 3, 5)]
    assert len(pos) == NC
    for n, (y, p) in enumerate(pos): S.put(wd_load(n), G[y][p], force=True, cost=3, cls="vm")
    it = [f"s_and_b32 s{t4}, s{sW}, 1", f"s_lshl_b32 s{t4}, s{t4}, 1", f"v_bfe_u32 v233, v{vLANE}, 3, 1", f"v_add_u32 v233, s{t4}, v233",
          f"v_lshrrev_b32 v234, 4, v{vLANE}", f"v_xor_b32 v233, v233, v234", f"v_bfe_u32 v234, v{vLANE}, 1, 2", f"v_lshl_add_u32 v233, v233, 2, v234",
          f"v_and_b32 v234, 1, v{vLANE}", f"v_lshlrev_b32 v234, 4, v234", f"s_movk_i32 s{t4}, 0x3f80", f"v_lshlrev_b32 v234, v234, s{t4}"]
    for q in range(4):
        it += [f"v_cmp_eq_u32 s[{pc.sM1}:{pc.sM1+1}], {q}, v233", f"v_cndmask_b32 v235, 0, v234, s[{pc.sM1}:{pc.sM1+1}]", f"v_accvgpr_write_b32 a{252+q}, v235"]
    S.chain(it, G[12][0], G[16][15])

def epi_hook(e, blk, m):
    kw = DEV.kw
    k = 2 * blk + m
    if k == 0:
        e(f"s_lshl_b32 s{t4}, s{sW}, 10\nv_xor_b32 v{vHL}, s{t4}, v{vL16}")
        for j in range(1, 4): e(f"v_xor_b32 v{vHL+j}, {1024*j}, v{vHL}")
    if k == 4: e.wait("wdc")
    hk = int(kw.get("hk", 11))
    n0 = NC + 3 * k
    for n in range(n0, min(n0 + 3, 70)): wd_load(n)(e)
    if hk <= k < hk + 4:
        s = k - hk
        e(h_off(s))
        for x in h_loads(s): e(x, f"H{s}")

def retry(s, hi):
    def f(e):
        e(f"s_cbranch_vccnz D_rt{s}")
        st = e.snap()
        e(f"D_ok{s}:")
        def ool():
            e.restore(st)
            e(f"D_rt{s}:\ns_sub_u32 s{sBUD}, s{sBUD}, 1\ns_cbranch_scc1 D_gv{s}")
            for q in range(s, hi + 1):
                for x in h_loads(q): e(x)
            e("s_waitcnt vmcnt(0)")
            for x in h_chk(s): e(x)
            e(f"s_cbranch_vccnz D_rt{s}\ns_branch D_ok{s}\nD_gv{s}:\ns_mov_b32 s{sBUD}, 0\ns_branch D_ok{s}")
        e.ool.append(ool)
    return f

def phaseD(e, stop):
    kw = DEV.kw
    e("s_waitcnt vmcnt(48)")
    for s in (4, 5):
        e(h_off(s))
        for x in h_loads(s): e(x, f"H{s}")
    for x in h_chk(0): e(x)
    retry(0, 5)(e)
    stamp(e, "dst"); stampc(e, "c:dst")
    S = Sched(e); G = []
    for s in range(14):
        g = []
        for j in (1, 2, 3, 0):
            for cf in range(5):
                D = acc(j, cf)
                g.append(S.mfma(f"v_mfma_f32_16x16x32_bf16 {vr(D,4)}, {R(WREG[5*s+cf],4)}, {vr(HB[s % NB]+4*j,4)}, {vr(D,4) if s else 0}"))
        if s == 9:
            for cf in range(5): S.mfma(f"v_mfma_f32_16x16x32_bf16 {vr(acc(0,cf),4)}, {vr(RES+4*cf,4)}, {R(SELA,4)}, {vr(acc(0,cf),4)}")
        G.append(g)
    for s in range(14):
        g = G[s]
        q = s + NB - 1
        if s >= 1 and q < 14:
            S.put(h_off(q), g[0], force=True)
            for x, p in zip(h_loads(q), (1, 3, 5, 7)): S.put(x, g[p], force=True, tag=f"H{q}")
        if s < 13:
            for x, p in zip(h_chk(s + 1), (13, 15, 17)): S.put(x, g[p], force=True)
            S.put(retry(s + 1, min(13, max(5, q))), g[18], force=True)
    for cf in range(5):
        S.put(f"v_accvgpr_read_b32 v{233 + (cf & 1)}, a{aRES+cf}", G[0][2 + 2 * cf], force=True)
        S.put(f"buffer_load_dwordx4 {vr(RES+4*cf,4)}, v{233 + (cf & 1)}, s[{sWS}:{sWS+3}], s{sRS} offen sc1", G[0][3 + 2 * cf], force=True, tag="res")
    vRW, vRR, vO = 232, 235, 7
    it = []
    for j in range(1, 4):
        it += [f"s_xor_b32 s{t0}, s{sW}, {j}", f"s_mul_i32 s{t0}, s{t0}, 15360", f"s_add_u32 s{t0}, s{t0}, {RED + 5120*(j-1)}", f"v_add_u32 v{vRW+j-1}, s{t0}, v{vL16}"]
    it += [f"s_mul_i32 s{t0}, s{sW}, 15360", f"s_add_u32 s{t0}, s{t0}, {RED}", f"v_add_u32 v{vRR}, s{t0}, v{vL16}",
           f"v_and_b32 v{vO}, 15, v{vLANE}", f"v_mul_u32_u24 v{vO}, 1280, v{vO}", f"v_lshrrev_b32 v250, 4, v{vLANE}", f"v_lshl_add_u32 v{vO}, v250, 3, v{vO}",
           f"s_mov_b32 s{sX}, s{sOUT}", f"s_mov_b32 s{sX+1}, s{sOUT+1}",
           f"s_lshl_b32 s{t0}, s{sRB}, 2", f"s_add_u32 s{t0}, s{t0}, s{sFQ}", f"s_lshl_b32 s{t0}, s{t0}, 2", f"s_add_u32 s{t0}, s{t0}, s{sW}",
           f"s_mul_i32 s{t0}, s{t0}, {16*1280}", f"s_mul_i32 s{t1}, s{sJ8}, 160", f"s_add_u32 s{t0}, s{t0}, s{t1}"]
    S.chain(it, G[3][8], G[8][19])
    g = G[13]
    for jj, j in enumerate((1, 2)):
        for cf in range(5): S.put(f"ds_write_b128 v{vRW+j-1}, {vr(acc(j,cf),4)} offset:{1024*cf}", g[5 * jj + 5 + cf + 2], force=True)
    for cf in range(3): S.put(f"ds_write_b128 v{vRW+2}, {vr(acc(3,cf),4)} offset:{1024*cf}", g[17 + cf], force=True)
    S.report("D"); S.emit()
    for cf in range(3, 5): e(f"ds_write_b128 v{vRW+2}, {vr(acc(3,cf),4)} offset:{1024*cf}")
    stampc(e, "c:dmm"); stamp(e, "dmm")
    e.barrier()
    for cf in range(5):
        for k in range(3): e(f"ds_read_b128 {vr(8+12*cf+4*k,4)}, v{vRR} offset:{5120*k + 1024*cf}")
    for cf in range(5):
        D = acc(0, cf); T = 8 + 12 * cf
        for p in range(2): e(f"v_pk_add_f32 {vr(D+2*p,2)}, {vr(D+2*p,2)}, {vr(T+2*p,2)}")
        for p in range(2): e(f"v_pk_add_f32 {vr(T+4+2*p,2)}, {vr(T+4+2*p,2)}, {vr(T+8+2*p,2)}")
        for p in range(2): e(f"v_pk_add_f32 {vr(D+2*p,2)}, {vr(D+2*p,2)}, {vr(T+4+2*p,2)}")
        for p in range(2): e(f"v_cvt_pk_bf16_f32 v{T+p}, v{D+2*p}, v{D+2*p+1}")
        e(f"buffer_store_dwordx2 {vr(T,2)}, v{vO}, s[{sX}:{sX+3}], s{t0} offen offset:{32*cf}")
    stamp(e, "out")
```

```python
from em import *
from lay import *
sys.path.insert(0, "gen")
from phA import fbits, LOG2E, cmuls, zbases, rho

class Ctx: pass
DEV = Ctx(); DEV.prof = False; DEV.n = 0; DEV.names = []
def stamp(e, name):
    if not DEV.prof: return
    if name in DEV.names: i = DEV.names.index(name)
    else: i = len(DEV.names); DEV.names.append(name)
    e(f"s_memrealtime s[100:101]\ns_waitcnt lgkmcnt(0)\nv_writelane_b32 v{vSTAMP}, s100, {i}")
def stampc(e, name):
    if not DEV.prof: return
    if name in DEV.names: i = DEV.names.index(name)
    else: i = len(DEV.names); DEV.names.append(name)
    e(f"s_memtime s[100:101]\ns_waitcnt lgkmcnt(0)\nv_writelane_b32 v{vSTAMP}, s100, {i}")
def stamp_dump(e):
    if not DEV.prof: return
    stamp(e, "end")
    e(f"""
    s_lshl_b32 s{t0}, s2, 2
    s_add_u32 s{t0}, s{t0}, s{sW}
    s_lshl_b32 s{t0}, s{t0}, 8
    s_add_u32 s{t0}, s{t0}, {WS_DBG}
    v_lshlrev_b32 v2, 2, v{vLANE}
    buffer_store_dword v{vSTAMP}, v2, s[{sWS}:{sWS+3}], s{t0} offen
    """)

XR = 8; PB = 20; XG = 96; SP = 112; XF = 128; UF = 152; RS = 176; MR = 184
vONE = 192
vEP = 196
vSPA = 197
def srd2(e, d, lo, nbytes):
    e(f"s_mov_b32 s{d}, s{lo}\ns_mov_b32 s{d+1}, s{lo+1}\ns_mov_b32 s{d+2}, {nbytes}\ns_mov_b32 s{d+3}, 0x00020000")

def prologue(e):
    e(f"""
    s_cmp_ge_u32 s2, 256
    s_cbranch_scc1 END
    s_load_dwordx16 s[32:47], s[0:1], 0
    s_load_dwordx16 s[48:63], s[0:1], 64
    v_lshrrev_b32 v2, 6, v0
    v_and_b32 v{vLANE}, 63, v0
    s_and_b32 s{sXX}, s2, 7
    s_lshr_b32 s{sN}, s2, 3
    v_readfirstlane_b32 s{sW}, v2
    s_lshr_b32 s{sJ8}, s{sN}, 2
    s_lshr_b32 s{sFQ}, s{sXX}, 1
    s_and_b32 s{sRB}, s{sXX}, 1
    s_lshl_b32 s{sRB}, s{sRB}, 2
    s_and_b32 s{t0}, s{sN}, 3
    s_add_u32 s{sRB}, s{sRB}, s{t0}
    s_lshl_b32 s{sTB}, s{sRB}, 2
    s_add_u32 s{sTB}, s{sTB}, s{sW}
    s_lshl_b32 s{sP}, s{sTB}, 3
    s_add_u32 s{sP}, s{sP}, s{sJ8}
    s_lshl_b32 s{sP}, s{sP}, 2
    s_add_u32 s{sP}, s{sP}, s{sFQ}
    s_lshl_b32 s{sP}, s{sP}, 7
    s_add_u32 s{sP}, s{sP}, {WS_P}
    s_lshl_b32 s{t4}, s{sXX}, 5
    s_add_u32 s{t4}, s{t4}, s{sN}              ; p
    s_and_b32 s{t0}, s{t4}, 127
    s_cmp_ge_u32 s{t0}, 78
    s_cselect_b32 s{t1}, 78, 0
    s_cselect_b32 s{t2}, 77, 0
    s_cselect_b32 s{t3}, 25, 26
    s_cselect_b32 s96, 14, 12                  ; nT
    s_cselect_b32 s97, 36, 0
    s_cselect_b32 s95, 3, 0
    s_sub_u32 s{t2}, s{t0}, s{t2}
    s_sub_u32 s{t0}, s{t0}, s{t1}
    s_mul_i32 s{t2}, s{t2}, 2521
    s_lshr_b32 s{t2}, s{t2}, 16                ; l0
    s_mul_i32 s{t3}, s{t3}, s{t2}
    s_sub_u32 s{t0}, s{t0}, s{t3}              ; r
    s_add_u32 s95, s95, s{t2}                  ; line
    s_mul_i32 s{t2}, s{t2}, s96
    s_add_u32 s97, s97, s{t2}
    s_lshr_b32 s{t1}, s{t4}, 7
    s_mul_i32 s{t2}, s{t1}, 5
    s_add_u32 s95, s95, s{t2}
    s_lshl_b32 s95, s95, 6
    s_lshl_b32 s{t1}, s{t1}, 6
    s_add_u32 s97, s97, s{t1}                  ; aCum
    s_add_u32 s{t1}, s97, s{t0}                ; a
    s_sub_u32 s97, s{t4}, s97
    s_sub_u32 s97, s97, s96                    ; b
    s_sub_u32 s{t2}, s96, 1
    s_cmp_ge_u32 s{t0}, s96
    s_cselect_b32 s{sODD}, 1, 0
    s_cselect_b32 s{sM}, s97, s{t1}
    s_cselect_b32 s{t2}, s{t2}, s{t0}
    s_lshl_b32 s{t0}, s{t0}, 1
    s_add_u32 s{t2}, s{t2}, s{t0}
    s_add_u32 s{t2}, s{t2}, s95                ; chb
    v_lshrrev_b32 v3, 5, v0
    v_and_b32 v4, 31, v0
    v_mul_u32_u24 v5, 1280, v3
    v_lshl_add_u32 v5, v4, 4, v5
    v_lshlrev_b32 v6, 3, v4
    v_sub_u32 v6, v5, v6
    s_mul_i32 s{t1}, s2, 10240
    s_lshl_b32 s{t3}, s{t2}, 8
    v_and_b32 v7, 127, v0
    v_lshl_add_u32 v7, v7, 1, s{t3}
    s_lshl_b32 s{t3}, s{t2}, 1
    s_and_b32 s{t3}, s{t3}, -4
    s_and_b32 s{sSH}, s{t2}, 1
    s_lshl_b32 s{sSH}, s{sSH}, 4
    v_mov_b32 v{vEP}, 0
    v_mov_b32 v{vONE}, -1
    v_mov_b32 v{vONE+1}, -1
    v_mov_b32 v{vONE+2}, -1
    v_mov_b32 v{vONE+3}, -1
    s_waitcnt lgkmcnt(0)
    """)
    if DEV.prof: e(f"v_mov_b32 v{vSTAMP}, 0")
    stamp(e, "start")
    srd2(e, sWS, 62, WS_SIZE); srd2(e, sX, 32, 2048 * 1280)
    if DEV.kw.get("lat"):
        src = {"g": 52, "x": 50, "u": 32, "w": 62}[DEV.kw.get("lsrc", "g")]
        srd2(e, sT4, src, 2000000)
        e(f"s_lshl_b32 s{t0}, s2, 8\nv_mov_b32 v100, 0")
        for i in range(int(DEV.kw["lat"])):
            e(f"buffer_load_dword v100, v100, s[{sT4}:{sT4+3}], s{t0} offen\ns_add_u32 s{t0}, s{t0}, 65536+4096\nv_and_b32 v100, 0, v100")
        stamp(e, "lat")
    e(f"""
    buffer_load_dword v{vEP}, v{vEP}, s[{sWS}:{sWS+3}], 0 offen sc1
    buffer_load_dwordx4 v[8:11], v5, s[{sX}:{sX+3}], s{t1} offen
    buffer_load_dwordx4 v[12:15], v5, s[{sX}:{sX+3}], s{t1} offen offset:512
    buffer_load_dwordx2 v[16:17], v6, s[{sX}:{sX+3}], s{t1} offen offset:1024
    s_load_dwordx2 s[98:99], s[46:47], s{t3}
    s_load_dwordx2 s[{sDK}:{sDK+1}], s[48:49], s{t3}
    """)
    for k in range(3):
        for j, sb in enumerate((34, 36)): e(f"global_load_short_d16_hi v{PB+8*k+j}, v7, s[{sb}:{sb+1}] offset:{256*k}")
    e(f"s_cmp_lt_u32 s{sW}, 2\ns_cbranch_scc1 A_p1")
    st = e.snap()
    for k in range(3):
        for j, sb in enumerate((38, 40, 42, 44)): e(f"global_load_short_d16_hi v{PB+8*k+2+j}, v7, s[{sb}:{sb+1}] offset:{256*k}")
    e("A_p1:"); e.join(st)
    e(f"""
    v_lshrrev_b32 v2, 3, v0
    s_mov_b32 s{t1}, 81920
    v_mul_lo_u32 v2, v2, s{t1}
    v_and_b32 v4, 7, v0
    s_and_b32 s{t0}, s{sN}, 6
    v_xor_b32 v5, s{t0}, v4
    v_lshl_add_u32 v{vH01}, v5, 4, v2
    s_and_b32 s{t1}, s{sM}, 6
    s_cmp_eq_u32 s{sODD}, 1
    s_cselect_b32 s{t0}, s{t0}, s{t1}
    v_xor_b32 v5, s{t0}, v4
    v_lshl_add_u32 v{vH2}, v5, 4, v2
    s_lshl_b32 s{t0}, s{sXX}, 5
    s_add_u32 s{t0}, s{t0}, s{sN}
    s_lshl_b32 s{t0}, s{t0}, 7
    s_add_u32 s{sHS}, s{t0}, {WS_H1}             ; part 0
    s_add_u32 s{t0}, s{sHS}, 32768               ; part 1
    s_lshl_b32 s{t1}, s{sM}, 7
    s_add_u32 s{t1}, s{t1}, {WS_H1 + 65536}
    s_cmp_eq_u32 s{sODD}, 1
    s_cselect_b32 s{sHS+1}, s{sHS}, s{t0}
    s_cselect_b32 s{sHS+2}, s{t0}, s{t1}
    """)
    for k in range(3):
        e(f"buffer_store_dwordx4 {vr(vONE,4)}, v{vH2 if k == 2 else vH01}, s[{sWS}:{sWS+3}], s{sHS+k} offen sc1", "hclr")
    clear_small(e)
    stamp(e, "iss")
    e(f"s_mov_b32 s{sGB}, s{t3}")
    e(f"v_mul_u32_u24 v{vGA}, 1280, v0")
    if DEV.kw.get("xpf", "0") == "1":
        e(f"""
        v_lshrrev_b32 v2, 2, v0
        v_mul_u32_u24 v2, 1280, v2
        v_and_b32 v4, 3, v0
        v_lshl_add_u32 v2, v4, 6, v2
        s_mul_i32 s{t0}, s{sXX}, 160
        s_and_b32 s{t0}, s{t0}, -128
        s_mul_i32 s{t1}, s{sN}, 81920
        s_add_u32 s{t0}, s{t0}, s{t1}
        buffer_load_dword v199, v2, s[{sX}:{sX+3}], s{t0} offen
        """)
    gather(e, range(int(DEV.kw.get("g0", 2))))
    if DEV.kw.get("cpf", "0") == "1": e(f"""
    s_getpc_b64 s[{sT4}:{sT4+1}]
    A_pc:
    s_mov_b32 s{sT4+2}, code_end-A_pc
    s_mov_b32 s{sT4+3}, 0x00020000
    s_lshl_b32 s{t0}, s{sN}, 12
    s_lshl_b32 s{t1}, s{sW}, 10
    s_add_u32 s{t0}, s{t0}, s{t1}
    v_lshlrev_b32 v198, 6, v{vLANE}
    s_mov_b64 exec, 0xffff
    buffer_load_dword v198, v198, s[{sT4}:{sT4+3}], s{t0} offen
    s_mov_b64 exec, -1
    """)
    srd2(e, sWG, 52, 640 * 3456)
    e(f"""
    s_sub_u32 s{sWU}, s54, {UPOFF}
    s_subb_u32 s{sWU+1}, s55, 0
    s_mov_b32 s{sWU+2}, {640*3456 + UPOFF}
    s_mov_b32 s{sWU+3}, 0x00020000
    s_mov_b32 s{sOUT}, s58
    s_mov_b32 s{sOUT+1}, s59
    """)
    srd2(e, sWD, 56, 1728 * 1280)
    e(f"""
    s_lshl_b32 s{t0}, s{sFQ}, 3
    s_add_u32 s{t0}, s{t0}, s{sJ8}               ; fs
    s_and_b32 s{sQ}, s{t0}, 3
    s_mul_i32 s{sU0}, s{t0}, 27
    s_lshr_b32 s{sU0}, s{sU0}, 2
    s_lshr_b32 s{t0}, s{t0}, 2                   ; gH
    s_mul_i32 s{sG2}, s{t0}, {7*131072}
    s_lshl_b32 s{t0}, s{sTB}, 12
    s_add_u32 s{sG2}, s{sG2}, s{t0}
    s_lshl_b32 s{t0}, s{sQ}, 8
    s_add_u32 s{sG2}, s{sG2}, s{t0}
    s_add_u32 s{sG2}, s{sG2}, {WS_H2}
    s_mul_i32 s{t1}, s{sTB}, 81920
    s_add_u32 s{t1}, s{t1}, {WS_H1}
    """)
    for c in range(8):
        e(f"""
        s_add_u32 s{t0}, s{sJ8}, {c}
        s_and_b32 s{t0}, s{t0}, 7
        s_lshl_b32 s{t0}, s{t0}, 12
        s_add_u32 s{sHO+c}, s{t0}, s{t1}
        """)
    e(f"s_lshr_b32 s{t2}, s{sJ8}, 1")
    for c in range(4):
        e(f"""
        s_add_u32 s{t0}, s{t2}, {c}
        s_and_b32 s{t0}, s{t0}, 3
        s_lshl_b32 s{t0}, s{t0}, 12
        s_add_u32 s{sHO+8+c}, s{t0}, s{t1}
        """)
    e(f"""
    v_lshlrev_b32 v{vL16}, 4, v{vLANE}
    s_mul_i32 s{t0}, s{sW}, 56
    v_add_u32 v2, s{t0}, v{vLANE}
    v_mul_u32_u24 v4, 9363, v2
    v_lshrrev_b32 v4, 16, v4
    v_mul_u32_u24 v5, 7, v4
    v_sub_u32 v5, v2, v5                         ; c
    v_min_u32 v4, 31, v4
    v_and_b32 v6, 1, v4
    v_lshlrev_b32 v6, 1, v6
    v_bfe_u32 v7, v4, 1, 1
    v_and_b32 v4, 28, v4
    v_or3_b32 v4, v4, v6, v7                     ; lambda
    s_lshl_b32 s{t0}, s{sU0}, 4
    v_lshl_add_u32 v{vWc}, v5, 4, s{t0}
    s_lshl_b32 s{t0}, s{sJ8}, 7
    s_add_u32 s{t0}, s{t0}, {TBL}
    v_lshl_add_u32 v{vWl}, v4, 2, s{t0}
    s_movk_i32 s{sC3456}, 3456
    """)
    e(f"""
    v_and_b32 v2, 127, v0
    v_cmp_le_u32 vcc, 78, v2
    v_mov_b32 v4, 2521
    v_mov_b32 v5, 2622
    v_cndmask_b32 v4, v4, v5, vcc
    v_subrev_u32 v5, 78, v2
    v_cndmask_b32 v2, v2, v5, vcc                ; r0
    v_mul_u32_u24 v4, v4, v2
    v_lshrrev_b32 v4, 16, v4                     ; l0
    v_cndmask_b32 v5, 26, 25, vcc
    v_mul_u32_u24 v5, v5, v4
    v_sub_u32 v2, v2, v5                         ; r
    v_cndmask_b32 v5, 12, 14, vcc                ; nT
    v_cndmask_b32 v6, 0, 36, vcc
    v_mad_u32_u24 v6, v5, v4, v6
    v_cndmask_b32 v7, 0, 3, vcc
    v_add_u32 v4, v4, v7
    v_lshrrev_b32 v7, 7, v0
    v_mad_u32_u24 v4, v7, 5, v4                  ; line
    v_lshl_add_u32 v6, v7, 6, v6
    v_add_u32 v6, v6, v2                         ; a
    v_cmp_ge_u32 vcc, v2, v5
    v_cndmask_b32 v5, v2, v5, vcc
    v_lshl_add_u32 v5, v2, 1, v5
    v_lshl_add_u32 v4, v4, 6, v5                 ; ch0
    v_lshlrev_b32 v7, 2, v4
    v_add_u32 v7, {INV}, v7
    v_and_b32 v2, 6, v0
    v_lshlrev_b32 v2, 4, v2
    v_lshl_add_u32 v2, v0, 7, v2
    v_add_u32 v5, 32768, v2
    ds_write2_b32 v7, v2, v5 offset1:1
    v_and_b32 v2, 6, v6
    v_lshlrev_b32 v2, 4, v2
    v_lshl_add_u32 v2, v6, 7, v2
    v_add_u32 v2, 65536, v2
    v_mov_b32 v5, {INV + 2560}
    v_cndmask_b32 v7, v7, v5, vcc
    ds_write_b32 v7, v2 offset:8
    v_mul_u32_u24 v4, 3456, v4
    v_lshlrev_b32 v5, 2, v0
    v_add_u32 v5, {TBL}, v5
    ds_write2st64_b32 v5, v4, v4 offset1:4
    v_add_u32 v4, 6912, v4
    v_lshlrev_b32 v6, 2, v6
    v_add_u32 v6, {TBL + 2048}, v6
    v_add_u32 v5, 4096, v5
    v_cndmask_b32 v6, v6, v5, vcc
    ds_write2st64_b32 v6, v4, v4 offset1:2
    """)
    e(f"""
    v_lshrrev_b32 v4, 5, v{vLANE}
    v_bfe_u32 v5, v{vLANE}, 4, 1
    v_and_b32 v6, 15, v{vLANE}
    v_lshlrev_b32 v6, 4, v6
    v_lshl_add_u32 v7, v5, 10, v6
    v_lshl_add_u32 v{vG32}, v4, 17, v7
    v_lshl_add_u32 v4, v5, 1, v4
    v_xor_b32 v4, s{sFQ}, v4
    v_lshl_add_u32 v{vG16}, v4, 10, v6
    """)
    e(f"""
    v_subrev_u32 v2, 104, v0
    v_and_b32 v2, 63, v2
    v_bfe_u32 v4, v2, 3, 2
    v_mul_u32_u24 v4, 1088, v4
    v_lshrrev_b32 v5, 5, v2
    v_mul_u32_u24 v5, {IMG1}, v5
    v_and_b32 v2, 7, v2
    v_lshl_add_u32 v2, v2, 2, v4
    v_add3_u32 v2, v2, v5, 0
    v_lshlrev_b32 v4, 2, v0
    v_add_u32 v4, {KSZ}, v4
    v_cmp_gt_u32 vcc, 104, v0
    v_cndmask_b32 v2, v2, v4, vcc
    v_add_u32 v2, {KU0}, v2
    v_mov_b32 v4, 0
    v_and_b32 v5, 7, v0
    v_lshlrev_b32 v5, 2, v5
    v_add_u32 v5, {CB}, v5
    """)
    for k in range(3): e(f"ds_write_b32 v2, v4 offset:{k*CHS}")
    e("ds_write_b32 v5, v4")
    e(f"""
    s_lshr_b64 s[{t4}:{t5}], s[98:99], s{sSH}
    s_lshr_b64 s[{sDK}:{sDK+1}], s[{sDK}:{sDK+1}], s{sSH}
    s_lshl_b32 s{t0}, s{t4}, 16
    s_and_b32 s{t1}, s{t4}, 0xffff0000
    s_lshl_b32 s{t2}, s{t5}, 16
    s_lshl_b32 s{sDK+2}, s{sDK+1}, 16
    s_and_b32 s{sDK+1}, s{sDK}, 0xffff0000
    s_lshl_b32 s{sDK}, s{sDK}, 16
    v_mov_b32 v2, s{t0}
    v_writelane_b32 v2, s{t1}, 1
    v_writelane_b32 v2, s{t2}, 2
    v_mov_b32 v6, {fbits(LOG2E)}
    v_mul_f32 v4, {fbits(LOG2E)}, v2
    v_fma_f32 v5, v2, v6, -v4
    v_fmac_f32 v5, 0x32a57060, v2
    v_exp_f32 v4, v4
    v_mul_f32 v5, {fbits(0.6931471805599453)}, v5
    v_fma_f32 v4, v4, v5, v4
    v_cvt_pk_bf16_f32 v4, v4, v4
    v_and_b32 v4, 0xffff0000, v4
    v_readlane_b32 s{sDT}, v4, 0
    v_readlane_b32 s{sDT+1}, v4, 1
    v_readlane_b32 s{sDT+2}, v4, 2
    s_mov_b32 s{sBUD}, 20000
    """)

vGA = 200
def gather(e, js):
    for j in js:
        e(f"s_add_u32 s{t5}, s{sGB}, {327680*j}")
        e(f"buffer_load_dwordx2 {vr(XG+2*j,2)}, v{vGA}, s[{sX}:{sX+3}], s{t5} offen", "gat")

def ln1(e):
    stamp(e, "pro")
    e(f"s_mov_b32 s{t0}, 0x3f803f80")
    for i in range(10):
        e(f"v_dot2_f32_bf16 v{44+2*(i&1)}, v{8+i}, s{t0}, {'v%d' % (44+2*(i&1)) if i > 1 else 0}")
        e(f"v_dot2_f32_bf16 v{45+2*(i&1)}, v{8+i}, v{8+i}, {'v%d' % (45+2*(i&1)) if i > 1 else 0}")
    stamp(e, "xrow")
    e(f"""
    v_readfirstlane_b32 s{sTAG}, v{vEP}
    v_add_f32 v44, v44, v46
    v_add_f32 v45, v45, v47
    s_mul_i32 s{sTAG}, s{sTAG}, 0x9E3779B1
    s_add_u32 s{sTAG}, s{sTAG}, 0x7F4A7C15
    """)
    for sh in ("quad_perm:[1,0,3,2]", "quad_perm:[2,3,0,1]", "row_half_mirror", "row_mirror"):
        e(f"v_add_f32_dpp v44, v44, v44 {sh} row_mask:0xf bank_mask:0xf")
        e(f"v_add_f32_dpp v45, v45, v45 {sh} row_mask:0xf bank_mask:0xf")
    e(f"""
    v_mov_b32 v46, v44
    v_mov_b32 v47, v45
    v_permlane16_swap_b32 v44, v46
    v_permlane16_swap_b32 v45, v47
    v_add_f32 v44, v44, v46
    v_add_f32 v45, v45, v47
    v_mul_f32 v44, {fbits(1/640)}, v44
    v_mul_f32 v45, {fbits(1/640)}, v45
    v_fma_f32 v45, -v44, v44, v45
    v_max_f32 v45, 0, v45
    v_cvt_pk_bf16_f32 v46, v44, v45
    v_and_b32 v45, 0xffff0000, v46
    v_add_f32 v45, {fbits(1e-5)}, v45
    v_cvt_pk_bf16_f32 v45, v45, v45
    v_and_b32 v45, 0xffff0000, v45
    v_sqrt_f32 v45, v45
    v_mov_b32 v49, s{sTAG}
    v_mov_b32 v51, s{sTAG}
    v_cvt_pk_bf16_f32 v48, v44, v45
    s_lshl_b32 s{t1}, s2, 7
    s_lshl_b32 s{t2}, s{sW}, 4
    v_readlane_b32 s{t0}, v48, 32
    s_add_u32 s{t1}, s{t1}, s{t2}
    s_add_u32 s{t1}, s{t1}, {WS_ST}
    v_mov_b32 v50, s{t0}
    v_mov_b32 v2, 0
    s_mov_b64 exec, 1
    """)
    e.wait("hclr")
    e(f"buffer_store_dwordx4 v[48:51], v2, s[{sWS}:{sWS+3}], s{t1} offen sc1")
    e("s_mov_b64 exec, -1")
    stamp(e, "pub")

def clears(e):
    for U in range(3):
        for th in range(2):
            e(f"s_add_u32 s{t0}, s{sG2}, {2*U*131072}") if th == 0 else None
            e(f"buffer_store_dwordx4 {vr(vONE,4)}, v{vG32}, s[{sWS}:{sWS+3}], s{t0} offen offset:{2048*th} sc1", "clr")
    e(f"s_add_u32 s{t0}, s{sG2}, {6*131072}")
    e(f"buffer_store_dwordx4 {vr(vONE,4)}, v{vG16}, s[{sWS}:{sWS+3}], s{t0} offen sc1", "clr")

def clear_small(e):
    e(f"""
    s_lshl_b32 s{t0}, s{sM}, 7
    s_add_u32 s{t0}, s{t0}, {WS_CS}
    s_cmp_lt_u32 s{sM}, 108
    s_cselect_b32 s{t1}, s{sODD}, 0
    s_cmp_eq_u32 s{sW}, 0
    s_cselect_b32 s{t1}, s{t1}, 0
    s_cmp_eq_u32 s{t1}, 1
    s_cselect_b32 s{t0}, s{t0}, s{sP}
    v_mov_b32 v2, s{sP}
    v_mov_b32 v4, s{t0}
    v_cmp_gt_u32 vcc, 8, v{vLANE}
    v_cndmask_b32 v2, v4, v2, vcc
    v_and_b32 v4, 7, v{vLANE}
    v_lshl_add_u32 v2, v4, 4, v2
    s_mov_b64 exec, 0xffff
    buffer_store_dwordx4 {vr(vONE,4)}, v2, s[{sWS}:{sWS+3}], 0 offen sc1
    s_mov_b64 exec, -1
    """, "hclr")

def tables(e):
    a = e
    g0 = int(DEV.kw.get("g0", 2)); gather(e, range(g0, g0 + int(DEV.kw.get("g1", 3))))
    e(f"""
    s_and_b32 s{t0}, s{sW}, 1
    s_lshl_b32 s{t0}, s{t0}, 8
    s_mov_b32 m0, s{t0}
    s_cmp_ge_u32 s{sW}, 2
    s_cbranch_scc1 A_pa
    """)
    st0 = e.snap()
    cnt = [0]; g0 = int(DEV.kw.get("g0", 2)); gq = []
    def tick(k, pos):
        for j in sched.get((k, pos), []): gather(e, [j])
    g1 = int(DEV.kw.get("g1", 3))
    rest = list(range(g0 + g1, 8)); sched = {}
    slots = {"0": [(1, 1), (2, 0), (2, 2)], "1": [(1, 0), (1, 2), (2, 1)], "2": [(1, 0), (1, 1), (1, 2), (2, 0)]}[DEV.kw.get("gs", "0")]
    for i, j in enumerate(rest): sched.setdefault(slots[i * len(slots) // len(rest)], []).append(j)
    def wr(src, k, row, neg=False):
        r = 60 + (cnt[0] & 3); cnt[0] += 1
        a(f"v_cvt_pk_bf16_f32 v{r}, v{src}, {'-' if neg else ''}v{src+1}")
        for x in (row if isinstance(row, list) else [row]):
            a(f"ds_write_addtid_b32 v{r} offset:{x * TS}")
    def pre(k, p):
        a(f"""
        v_mul_f32 v{p}, s{sDT+k}, v{p}
        v_mul_f32 v{p+1}, s{sDT+k}, v{p+1}
        v_mul_f32 v{p}, {fbits(LOG2E)}, v{p}
        v_mul_f32 v{p+1}, 0.15915494, v{p+1}
        """)
    e(f"s_cmp_eq_u32 s{sODD}, 1\ns_cbranch_scc1 A_b1")
    stp = e.snap()
    for k in range(3):
        p = PB + 8 * k
        if k == 1: e("A_b1:"); e.join(stp)
        if k: a(f"s_add_u32 m0, m0, {TCH}")
        if DEV.kw.get("tst"): e.waitregs(range(p, p + 6)); stampc(e, f"c:t{k}")
        pre(k, p)
        Z8 = 44
        c = [[46, 48, 50, 52], [64, 66, 68, 70]]
        tick(k, 0)
        zbases(a, [(Z8, 8), (c[0][1], 64)], p, p + 1, 56)
        a(f"v_mov_b32 v58, 0x00003f80")
        a(f"ds_write_addtid_b32 v58 offset:{32*TS}")
        cmuls(a, [(c[0][2], c[0][1], c[0][1]), (c[0][0], Z8, Z8)])
        wr(Z8, k, 33); wr(c[0][1], k, 40)
        cmuls(a, [(c[0][3], c[0][2], c[0][1])])
        wr(c[0][0], k, 34); wr(c[0][2], k, 48); wr(c[0][3], k, 56)
        for s in range(1, 8):
            src, dst = c[(s + 1) & 1], c[s & 1]
            lst = [(dst[q], src[q], Z8) for q in range(4) if q or s <= 5]
            cmuls(a, lst)
            if s in (2, 5): tick(k, 1 + (s > 2))
            for q in range(4):
                if q: wr(dst[q], k, 32 + 8 * q + s)
                elif s <= 5: wr(dst[q], k, 32 + s + 2)
    e("s_branch A_mm")
    stB = e.snap()
    e.restore(st0)
    e(f"A_pa:\ns_cmp_eq_u32 s{sODD}, 1\ns_cbranch_scc1 A_a1")
    stp = e.snap()
    for k in range(3):
        p = PB + 8 * k
        if k == 1: e("A_a1:"); e.join(stp)
        if k: a(f"s_add_u32 m0, m0, {TCH}")
        if DEV.kw.get("tst"): e.waitregs(range(p, p + 6)); stampc(e, f"c:t{k}")
        pre(k, p)
        Z1, Z8, Z256 = 44, 46, 48
        T = [64 + 2 * i for i in range(12)]
        tick(k, 0)
        zbases(a, [(Z1, 1), (Z8, 8), (Z256, 256)], p, p + 1, 56)
        a(f"v_mul_f32 v{p+2}, s{sDT+k}, v{p+2}\nv_mul_f32 v{p+3}, s{sDT+k}, v{p+3}")
        cmuls(a, [(T[0], p + 4, p + 2), (50, Z1, Z1)])
        wr(T[0], k, rho(0, 0), True)
        cmuls(a, [(T[1], T[0], Z1), (T[2], T[0], 50), (52, 50, 50), (T[8], T[0], Z256)])
        wr(T[1], k, rho(1, 0), True); wr(T[2], k, rho(2, 0), True); wr(T[8], k, [rho(0, 1), rho(1, 1)], True)
        cmuls(a, [(T[3], T[1], 50), (T[4], T[0], 52), (T[5], T[1], 52), (T[6], T[2], 52), (T[9], T[2], Z256), (T[10], T[8], Z8)])
        tick(k, 1)
        for i in (3, 4, 5, 6): wr(T[i], k, rho(i, 0), True)
        wr(T[9], k, rho(2, 1), True); wr(T[10], k, rho(7, 1), True)
        cmuls(a, [(T[7], T[3], 52), (T[0], T[4], Z256), (T[1], T[6], Z256), (T[2], T[8], Z256), (T[5], T[10], Z256)])
        wr(T[7], k, rho(7, 0), True); wr(T[0], k, [rho(3, 1), rho(4, 1), rho(5, 1)], True); wr(T[1], k, rho(6, 1), True)
        wr(T[2], k, rho(8, 0), True); wr(T[5], k, rho(10, 0), True)
        cmuls(a, [(T[3], T[0], Z256), (T[8], T[2], Z256), (T[10], T[5], Z256)])
        tick(k, 2)
        wr(T[3], k, rho(9, 0), True); wr(T[8], k, rho(8, 1), True); wr(T[10], k, rho(10, 1), True)
        cmuls(a, [(T[0], T[3], Z256), (T[2], T[8], Z256), (T[5], T[10], Z256)])
        wr(T[0], k, rho(9, 1), True); wr(T[2], k, rho(11, 0), True); wr(T[5], k, rho(12, 0), True)
        x, y, x2, y2 = T[2], T[5], T[8], T[10]
        for (i, h) in ((11, 1), (13, 0), (13, 1)):
            cmuls(a, [(x2, x, Z256), (y2, y, Z256)])
            wr(x2, k, rho(i, h), True); wr(y2, k, rho(i + 1, h), True)
            x, y, x2, y2 = x2, y2, x, y
    e("A_mm:"); e.join(stB)
    if DEV.kw.get("tst"): stampc(e, f"c:t3")

def poll_issue(e):
    for j in range(8):
        e(f"s_mov_b32 s{t5}, {WS_ST + 4096*j}\nbuffer_load_dwordx2 {vr(SP+2*j,2)}, v{vSPA}, s[{sWS}:{sWS+3}], s{t5} offen sc1")

def kmm(e):
    e(f"""
    v_and_b32 v4, 31, v{vLANE}
    v_lshrrev_b32 v5, 5, v{vLANE}
    v_mul_u32_u24 v6, {TS}, v4
    v_lshl_add_u32 v6, v5, 4, v6
    s_mul_i32 s{t0}, s{sW}, {TCH}
    v_add_u32 v6, s{t0}, v6
    s_mul_i32 s{t0}, s{sW}, {CHS}
    s_add_u32 s{t0}, s{t0}, {KU0}
    v_lshl_add_u32 v7, v{vLANE}, 2, s{t0}
    v_lshrrev_b32 v4, 3, v0
    v_and_b32 v5, 7, v0
    v_lshlrev_b32 v5, 3, v5
    v_lshl_add_u32 v{vSPA}, v4, 7, v5
    """)
    e.barrier()
    stamp(e, "tab")
    pm = DEV.kw.get("pm", "0")
    if pm == "0": poll_issue(e)
    e(f"""
    s_cmp_eq_u32 s{sW}, 3
    s_cbranch_scc1 A_wd
    s_cmp_lt_u32 s{sW}, s{sODD}
    s_cbranch_scc1 A_kd
    """)
    st = e.snap()
    D = 64; FA = 8; FB = 24
    def rd(s):
        e(f"ds_read_b128 {vr(FA+4*(s&3),4)}, v6 offset:{32*s}")
        e(f"ds_read_b128 {vr(FB+4*(s&3),4)}, v6 offset:{32*TS+32*s}")
    for s in range(3): rd(s)
    e(f"""
    s_cmp_eq_u32 s{sW}, 1
    s_cselect_b32 s{t0}, s{sDK+1}, s{sDK+2}
    s_cmp_eq_u32 s{sW}, 0
    s_cselect_b32 s{t0}, s{sDK}, s{t0}
    v_mov_b32 v4, 0
    v_writelane_b32 v4, s{t0}, 0
    """)
    for s in range(16):
        if s + 3 < 16: rd(s + 3)
        e(f"v_mfma_f32_32x32x16_bf16 {vr(D,16)}, {vr(FA+4*(s&3),4)}, {vr(FB+4*(s&3),4)}, {vr(D,16) if s else 0}")
    if pm == "1": poll_issue(e)
    e(f"v_and_b32 v5, 1, v{vLANE}\nv_cmp_eq_u32 vcc, 0, v5")
    e(f"v_add_f32 v{D}, v{D}, v4")
    def st2(r, sig, reg):
        e(f"ds_write_b32 v7, v{r} offset:{sig*1088 + 256*reg + 24}")
        e(f"ds_write_b32 v7, v{r} offset:{IMG1 + sig*1088 + 256*reg + 32}")
    for sg in range(4): e(f"v_cvt_pk_bf16_f32 v{8+sg}, v{D+sg}, v{D+4+sg}")
    e(f"""
    v_cvt_pk_bf16_f32 v12, v{D+8}, v{D+9}
    v_cvt_pk_bf16_f32 v13, v{D+8}, v{D+10}
    v_cvt_pk_bf16_f32 v14, v{D+9}, v{D+10}
    v_cndmask_b32 v20, v{D+12}, v{D+11}, vcc
    v_cndmask_b32 v21, v{D+14}, v{D+13}, vcc
    v_cvt_pk_bf16_f32 v15, v{D+11}, v20
    v_cvt_pk_bf16_f32 v16, v{D+11}, v{D+12}
    v_cvt_pk_bf16_f32 v17, v{D+13}, v21
    v_cvt_pk_bf16_f32 v18, v{D+13}, v{D+14}
    """)
    for sg in range(4): st2(8 + sg, sg, 0)
    for sg in range(4): st2((12, 12, 13, 14)[sg], sg, 1)
    for sg in range(4): st2((15, 16, 16, 16)[sg], sg, 2)
    for sg in range(4): st2((17, 18, 18, 18)[sg], sg, 3)
    if pm == "1":
        e("s_branch A_ke"); st2_ = e.snap(); e.restore(st)
        e("A_kd:"); poll_issue(e); e("A_ke:"); e.join(st2_)
    else:
        e("s_branch A_kd"); st1 = e.snap(); e.restore(st)
        e("A_wd:\ns_cmp_ge_u32 s2, 224\ns_cbranch_scc1 A_kd")
        wd_dma(e)
        e("A_kd:"); e.join(st, st1)
    stamp(e, "kd")

def wtable(e):
    e(f"s_lshr_b32 s{t0}, s{sJ8}, 1\ns_sub_u32 s{t0}, s{t0}, s{sJ8}\ns_lshl_b32 s{t0}, s{t0}, 7\nv_add_u32 v2, s{t0}, v{vWl}")
    for c in range(8): e(f"ds_read_b32 v{vW+c}, v{vWl} offset:{128*c}")
    for c in range(4): e(f"ds_read_b32 v{vW+8+c}, v2 offset:{2048+128*c}")
    e(f"""
    s_mul_i32 s{t0}, s{sJ8}, 320
    s_add_u32 s{t0}, s{t0}, {INV}
    v_and_b32 v2, 15, v{vLANE}
    v_lshl_add_u32 v2, v2, 2, s{t0}
    """)
    for c in range(5): e(f"ds_read_b32 v{8+c}, v2 offset:{64*c}")
    e(f"""
    s_lshr_b32 s{t0}, s{sW}, 1
    s_lshl_b32 s{t0}, s{t0}, 6
    v_and_b32 v2, 48, v{vLANE}
    v_or_b32 v2, s{t0}, v2
    """)
    for c in range(12): e(f"v_add_u32 v{vW+c}, v{vW+c}, v{vWc}")
    for c in range(5): e(f"v_xor_b32 v{8+c}, v{8+c}, v2")
    for c in range(5): e(f"v_accvgpr_write_b32 a{aRES+c}, v{8+c}")

def wd_dma(e):
    e(f"""
    s_lshr_b32 s{t0}, s2, 2                      ; gu
    s_mul_i32 s{t1}, s{t0}, 37
    s_lshr_b32 s{t1}, s{t1}, 8                   ; g
    s_mul_i32 s{t2}, s{t1}, 7
    s_sub_u32 s{t0}, s{t0}, s{t2}                ; u
    s_mul_i32 s{t1}, s{t1}, 216
    s_lshr_b32 s{t2}, s{t0}, 1
    s_lshl_b32 s{t2}, s{t2}, 4
    s_add_u32 s{t1}, s{t1}, s{t2}
    s_and_b32 s{t2}, s{t0}, 1
    s_lshl_b32 s{t2}, s{t2}, 2
    s_add_u32 s{t1}, s{t1}, s{t2}
    s_mul_i32 s{t1}, s{t1}, 1280
    s_and_b32 s{t2}, s2, 3
    s_mul_i32 s{t2}, s{t2}, 320
    s_add_u32 s{t1}, s{t1}, s{t2}
    s_cmp_eq_u32 s{t0}, 6
    s_cselect_b32 s{t0}, 2, 3
    v_lshrrev_b32 v8, 5, v{vLANE}
    v_bfe_u32 v9, v{vLANE}, 3, 1
    v_lshl_add_u32 v8, v8, 1, v9                 ; q
    v_mul_u32_u24 v8, 27, v8
    v_lshrrev_b32 v8, 2, v8
    v_bfe_u32 v9, v{vLANE}, 4, 1                 ; i
    v_lshlrev_b32 v9, s{t0}, v9
    v_lshl_add_u32 v8, v8, 3, v9
    v_bfe_u32 v9, v{vLANE}, 1, 2
    v_add_u32 v8, v8, v9
    v_mul_u32_u24 v8, 1280, v8
    v_and_b32 v9, 1, v{vLANE}
    v_lshl_add_u32 v8, v9, 4, v8
    s_mov_b32 m0, {WT}
    """)
    for c in range(10):
        e(f"buffer_load_dwordx4 v8, s[{sWD}:{sWD+3}], s{t1} offen lds", "wdd")
        if c < 9: e(f"s_add_u32 m0, m0, 1024\ns_add_u32 s{t1}, s{t1}, 32")

def wd_store(e):
    e(f"""
    s_cmp_lg_u32 s{sW}, 3
    s_cbranch_scc1 A_nwd
    s_cmp_ge_u32 s2, 224
    s_cbranch_scc1 A_nwd
    """)
    st = e.snap()
    e(f"""
    v_lshrrev_b32 v2, 5, v{vLANE}
    v_and_b32 v3, 31, v{vLANE}
    v_lshlrev_b32 v3, 3, v3
    v_lshl_add_u32 v2, v2, 9, v3
    v_add_u32 v2, {WT}, v2
    s_and_b32 s{t0}, s2, 3
    s_mul_i32 s{t0}, s{t0}, 112
    s_lshr_b32 s{t1}, s2, 2
    s_add_u32 s{t0}, s{t0}, s{t1}
    s_mul_i32 s{t0}, s{t0}, 5120
    s_add_u32 s{t0}, s{t0}, {WS_WD}
    """)
    e.wait("wdd")
    for c in range(10):
        for i in range(2): e(f"ds_read_b64_tr_b16 {vr(8+4*c+2*i,2)}, v2 offset:{1024*c + 256*i}")
    for c in range(10):
        if c % 5 == 4: e(f"s_add_u32 s{t0}, s{t0}, 4096")
        e(f"buffer_store_dwordx4 {vr(8+4*c,4)}, v{vL16}, s[{sWS}:{sWS+3}], s{t0} offen offset:{1024*(c % 5 & 3)} sc1", "wds")
        if c == 4: e(f"s_add_u32 s{t0}, s{t0}, {56*5120 - 4096}")
    e("A_nwd:"); e.join(st)

def xunpack(e):
    for j in range(8): e(f"v_lshrrev_b64 {vr(XG+2*j,2)}, s{sSH}, {vr(XG+2*j,2)}")
    for j in range(8):
        e(f"v_lshlrev_b32 v{XF+j}, 16, v{XG+2*j}\nv_and_b32 v{XF+8+j}, 0xffff0000, v{XG+2*j}\nv_lshlrev_b32 v{XF+16+j}, 16, v{XG+2*j+1}")

def upart(e):
    def chk():
        e(f"""
        v_min3_u32 v2, v{SP+1}, v{SP+3}, v{SP+5}
        v_max3_u32 v3, v{SP+1}, v{SP+3}, v{SP+5}
        v_min3_u32 v2, v2, v{SP+7}, v{SP+9}
        v_max3_u32 v3, v3, v{SP+7}, v{SP+9}
        v_min3_u32 v2, v2, v{SP+11}, v{SP+13}
        v_max3_u32 v3, v3, v{SP+11}, v{SP+13}
        v_min_u32 v2, v2, v{SP+15}
        v_max_u32 v3, v3, v{SP+15}
        v_cmp_ne_u32 vcc, s{sTAG}, v2
        v_cmp_ne_u32 s[{t0}:{t1}], s{sTAG}, v3
        s_or_b64 vcc, vcc, s[{t0}:{t1}]
        """)
    stamp(e, "kimg")
    e("A_chk:")
    chk()
    e("s_cbranch_vccnz A_retry\nA_ok:")
    st = e.snap()
    def ool():
        e.restore(st)
        e(f"A_retry:\ns_sub_u32 s{sBUD}, s{sBUD}, 1\ns_cbranch_scc1 A_giveup")
        poll_issue(e); e.waitvm()
        e(f"s_branch A_chk\nA_giveup:\ns_mov_b32 s{sBUD}, 0\ns_branch A_ok")
    e.ool.append(ool)
    stamp(e, "stats")
    ms = [SP + 2 * j for j in range(8)]
    for j in range(8): e(f"v_and_b32 v{RS+j}, 0xffff0000, v{ms[j]}")
    for j in range(8): e(f"v_rcp_f32 v{RS+j}, v{RS+j}")
    for j in range(8): e(f"v_lshlrev_b32 v{MR+j}, 16, v{ms[j]}")
    for j in range(4): e(f"v_pk_mul_f32 {vr(MR+2*j,2)}, {vr(MR+2*j,2)}, {vr(RS+2*j,2)}")
    e(f"v_lshlrev_b32 v2, 1, v0\nv_add_u32 v2, {KU0 + KSZ + UPAD}, v2")
    for k in range(3):
        for j in range(4):
            e(f"v_pk_fma_f32 {vr(UF+8*k+2*j,2)}, {vr(XF+8*k+2*j,2)}, {vr(RS+2*j,2)}, {vr(MR+2*j,2)} neg_lo:[0,0,1] neg_hi:[0,0,1]")
        for j in range(4): e(f"v_cvt_pk_bf16_f32 v{SP+4*k+j}, v{UF+8*k+2*j}, v{UF+8*k+2*j+1}")
        for j in range(4):
            e(f"ds_write_b16 v2, v{SP+4*k+j} offset:{k*CHS + 1024*j}\nds_write_b16_d16_hi v2, v{SP+4*k+j} offset:{k*CHS + 1024*j + 512}")

def epoch(e):
    e(f"""
    s_cmp_lg_u32 s2, 0
    s_cbranch_scc1 A_ne
    """)
    st = e.snap()
    e(f"""
    v_mov_b32 v2, s{sTAG}
    v_mov_b32 v3, 0
    s_mov_b64 exec, 1
    buffer_store_dword v2, v3, s[{sWS}:{sWS+3}], 0 offen sc1
    s_mov_b64 exec, -1
    A_ne:
    """)
    e.join(st)

def wtouch(e):
    e(f"""
    v_mul_u32_u24 v2, 21846, v0
    v_lshrrev_b32 v2, 16, v2                    ; tid/3
    v_mul_u32_u24 v3, 3, v2
    v_sub_u32 v3, v0, v3
    v_lshlrev_b32 v3, 6, v3
    v_min_u32 v3, 108, v3
    v_min_u32 v2, 79, v2
    s_and_b32 s{t0}, s{sN}, 3
    s_mul_i32 s{t0}, s{t0}, {160*3456}
    s_lshl_b32 s{t1}, s{sU0}, 4
    s_add_u32 s{t0}, s{t0}, s{t1}
    s_movk_i32 s{t1}, 3456
    v_mad_u32_u24 v2, v2, s{t1}, v3
    s_add_u32 s{t1}, s{t0}, {80*3456}
    buffer_load_dword v199, v2, s[{sWG}:{sWG+3}], s{t0} offen
    buffer_load_dword v199, v2, s[{sWU}:{sWU+3}], s{t0} offen offset:{UPOFF}
    buffer_load_dword v199, v2, s[{sWG}:{sWG+3}], s{t1} offen
    buffer_load_dword v199, v2, s[{sWU}:{sWU+3}], s{t1} offen offset:{UPOFF}
    """)
```
